```python
import torch

def _softmax(x, axis=-1):
    return torch.softmax(x, dim=axis)

def _gelu(x):
    return torch.nn.functional.gelu(x, approximate='tanh')

def _silu(x):
    return torch.nn.functional.silu(x)

def _sigmoid(x):
    return torch.sigmoid(x)

def _layernorm(x, axis=-1, eps=1e-05):
    m = x.mean(dim=axis, keepdim=True)
    v = x.var(dim=axis, keepdim=True, unbiased=False)
    return (x - m) / torch.sqrt(v + eps)

def _scatter_add(tgt, idx, src, axis=0):
    return tgt.clone().index_add_(axis, idx, src)

def _segment_sum(src, seg, n):
    out = torch.zeros((n,) + src.shape[1:], dtype=src.dtype)
    return out.index_add_(0, seg, src)

def _pad(x, pw):
    flat = tuple((v for pair in reversed(pw) for v in pair))
    return torch.nn.functional.pad(x, flat)
kernel_name = 'adaLN_cond__linear_kernel_hedgehog__dense_activation_relu__prompt'

def setup_inputs():

    _w = lambda a: (lambda t: t.to(torch.bfloat16) if t.is_floating_point() else t)(torch.as_tensor(a))

    def _A_setup():
        B, S, D, H = (1, 2048, 512, 32)
        Dh = D // H
        return {'x': _w((lambda *s: torch.randn(*s, dtype=torch.bfloat16) * 0.05)(B, S, D)), 'wqkv': _w((lambda *s: torch.randn(*s, dtype=torch.bfloat16) * 0.4)(D, 3 * D)), 'w_phi': _w((lambda *s: torch.randn(*s, dtype=torch.bfloat16) * 0.4)(H, Dh, Dh) * Dh ** (-0.5)), 'wo': _w((lambda *s: torch.randn(*s, dtype=torch.bfloat16) * 0.05)(D, D))}
    _A_in = _A_setup()

    def _B_setup():
        B, S, D, Dff = (1, 2048, 512, 1376)
        return {'x': _w((lambda *s: torch.randn(*s, dtype=torch.bfloat16) * 0.05)(B, S, D)), 'w1': _w((lambda *s: torch.randn(*s, dtype=torch.bfloat16) * 0.05)(D, Dff)), 'w2': _w((lambda *s: torch.randn(*s, dtype=torch.bfloat16) * 0.05)(Dff, D))}
    _B_in = _B_setup()
    return {'A_x': _A_in['x'], 'A_wqkv': _A_in['wqkv'], 'A_w_phi': _A_in['w_phi'], 'A_wo': _A_in['wo'], 'B_x': _B_in['x'], 'B_w1': _B_in['w1'], 'B_w2': _B_in['w2'], 'c': _w((lambda *s: torch.randn(*s, dtype=torch.bfloat16) * 0.1)(1, 512) * 8.0), 'w_mod': _w((lambda *s: torch.randn(*s, dtype=torch.bfloat16) * 0.1)(512, 6 * 512) * 512 ** (-0.5) * 8.0)}

def reference(A_x, A_wqkv, A_w_phi, A_wo, B_x, B_w1, B_w2, c, w_mod):

    def _A_ref(x, wqkv, w_phi, wo):
        B, S, D = x.shape
        H = 32
        Dh = D // H
        qkv = (lambda x, *d: x.permute(*d))((x @ wqkv).reshape(B, S, 3, H, Dh), 2, 0, 3, 1, 4)
        q, k, v = (qkv[0], qkv[1], qkv[2])
        pq = torch.einsum('bhsd,hdf->bhsf', q, w_phi)
        pk = torch.einsum('bhsd,hdf->bhsf', k, w_phi)
        phi_q = torch.concatenate([_softmax(pq, axis=-1), _softmax(-pq, axis=-1)], axis=-1)
        phi_k = torch.concatenate([_softmax(pk, axis=-1), _softmax(-pk, axis=-1)], axis=-1)
        kv = torch.einsum('bhsf,bhsd->bhfd', phi_k, v)
        z = torch.einsum('bhsf->bhf', phi_k)
        num = torch.einsum('bhqf,bhfd->bhqd', phi_q, kv)
        den = torch.einsum('bhqf,bhf->bhq', phi_q, z)[..., None] + 1e-06
        o = num / den
        return (lambda x, *d: x.permute(*d))(o, 0, 2, 1, 3).reshape(B, S, D) @ wo

    def _B_ref(x, w1, w2):
        h = torch.einsum('bsd,df->bsf', x, w1)
        zero = torch.zeros_like(h)
        h = torch.maximum(h, zero)
        return torch.einsum('bsf,fd->bsd', h, w2)
    x = A_x
    mod = (_silu(c) @ w_mod).reshape(c.shape[0], 6, 1, -1)
    sa, ca, ga, sb, cb, gb = (mod[:, 0].clone(), mod[:, 1].clone(), mod[:, 2].clone(), mod[:, 3].clone(), mod[:, 4].clone(), mod[:, 5].clone())
    h = _layernorm(x, axis=-1) * (1 + ca) + sa
    x = x + ga * _A_ref(h, A_wqkv, A_w_phi, A_wo)
    h = _layernorm(x, axis=-1) * (1 + cb) + sb
    x = x + gb * _B_ref(h, B_w1, B_w2)
    return x
```

```python
import re

TRANS = ('v_exp_f32', 'v_log_f32', 'v_rcp_f32', 'v_rsq_f32', 'v_sqrt_f32', 'v_sin_f32', 'v_cos_f32')
REG_RE = re.compile(r'^(-|\|)?(abs\()?([vas])(\d+|\[(\d+):(\d+)\])\)?\|?$')


def regs_of(tok):
    tok = tok.strip()
    if tok in ('vcc', 'vcc_lo', 'vcc_hi'):
        return {('s', 'vcc')}
    if tok in ('exec', 'exec_lo', 'exec_hi'):
        return {('s', 'exec')}
    if tok == 'm0':
        return {('s', 'm0')}
    m = REG_RE.match(tok)
    if not m:
        return set()
    k = m.group(3)
    if m.group(5) is not None:
        return {(k, i) for i in range(int(m.group(5)), int(m.group(6)) + 1)}
    return {(k, int(m.group(4)))}


class Ins:
    def __init__(self, text):
        self.text = text
        t = text.split(';')[0].strip()
        parts = t.split(None, 1)
        self.op = parts[0]
        rest = parts[1] if len(parts) > 1 else ''
        ops, depth, cur = [], 0, ''
        for ch in rest:
            if ch in '[(':
                depth += 1
            if ch in '])':
                depth -= 1
            if ch == ',' and depth == 0:
                ops.append(cur.strip())
                cur = ''
            else:
                cur += ch
        if cur.strip():
            ops.append(cur.strip())
        mods = ''
        if ops:
            last = ops[-1].split(None, 1)
            ops[-1] = last[0]
            mods = last[1] if len(last) > 1 else ''
        self.ops, self.mods = ops, mods
        op = self.op
        R = [regs_of(o) for o in ops]
        self.cls = 'other'
        self.w, self.r = set(), set()
        self.a = self.b = self.c = set()
        self.dpp = ('_dpp' in op) or ('quad_perm' in mods) or ('row_' in mods)
        self.ldsdma = False
        self.wide_store = set()
        allr = lambda L: set().union(*L) if L else set()
        if op.startswith('v_mfma'):
            self.cls = 'mfma'
            self.w = R[0]
            self.a, self.b, self.c = R[1], R[2], R[3]
            self.r = R[1] | R[2] | R[3]
            self.passes = 8 if '32x32x16' in op else 4
        elif op.startswith('v_'):
            self.cls = 'valu'
            if 'swap' in op:
                self.w = R[0] | R[1]
                self.r = R[0] | R[1]
            elif op.startswith('v_add_co') or op.startswith('v_addc_co') or op.startswith('v_sub_co'):
                self.w = R[0] | R[1]
                self.r = allr(R[2:])
            elif op == 'v_nop':
                pass
            else:
                self.w = R[0]
                self.r = allr(R[1:])
                if op.startswith('v_fmac') or op.startswith('v_dot2c') or op.startswith('v_writelane') or self.dpp:
                    self.r |= R[0]
            assert not op.startswith('v_cmpx')
        elif op.startswith('ds_'):
            self.cls = 'ds'
            if op.startswith('ds_read') or 'permute' in op or 'swizzle' in op:
                self.w = R[0]
                self.r = allr(R[1:])
            else:
                self.r = allr(R)
        elif op.startswith('buffer_') or op.startswith('global_'):
            self.cls = 'vmem'
            if ' lds' in (' ' + mods) or '_lds_' in op:
                self.ldsdma = True
                self.r = allr(R)
            elif 'load' in op:
                self.w = R[0]
                self.r = allr(R[1:])
                if 'd16' in op:
                    self.r |= R[0]
            else:
                self.r = allr(R)
                if 'x4' in op or 'x3' in op:
                    self.wide_store = R[0] if op.startswith('buffer_') else R[1]
        elif op.startswith('s_load') or op.startswith('s_mem'):
            self.cls = 'smem'
            self.w = R[0]
            self.r = allr(R[1:])
        elif op.startswith('s_'):
            self.cls = 'salu'
            if op.startswith(('s_cmp', 's_cbranch', 's_branch', 's_waitcnt', 's_nop', 's_barrier', 's_endpgm', 's_sleep', 's_setprio', 's_bitcmp')):
                self.r = allr(R)
            else:
                self.w = R[0] if R else set()
                self.r = allr(R[1:])
                if 'saveexec' in op:
                    self.w = self.w | {('s', 'exec')}
        self.trans = op.startswith(TRANS)
        self.dot = op.startswith('v_dot')
        self.states = 1
        if op == 's_nop':
            self.states = int(ops[0], 0) + 1


def vec(S):
    return {x for x in S if x[0] in 'va'}


def sca(S):
    return {x for x in S if x[0] == 's'}


def need(p, c):
    n = 0
    if p.cls == 'valu':
        pv = vec(p.w)
        ps = sca(p.w)
        if p.dot:
            if c.op == p.op:
                srcab = set()
                if c.op.startswith('v_dot2c'):
                    srcab = regs_of(c.ops[1]) | regs_of(c.ops[2])
                else:
                    srcab = regs_of(c.ops[1]) | regs_of(c.ops[2])
                if pv & srcab:
                    n = max(n, 3)
            elif pv & (c.r | c.w) and c.cls in ('valu', 'mfma', 'vmem', 'ds'):
                n = max(n, 3)
        if c.cls == 'mfma' and pv & c.r:
            n = max(n, 2)
        if c.cls == 'valu':
            if p.trans and not c.trans and pv & c.r:
                n = max(n, 1)
            if c.dpp and pv & c.r:
                n = max(n, 2)
            if 'permlane' in c.op and pv & c.r:
                n = max(n, 2)
            if c.op.startswith(('v_readlane', 'v_readfirstlane')) and pv & c.r:
                n = max(n, 1)
            if ps & c.r:
                n = max(n, 4 if c.op.startswith(('v_readlane', 'v_writelane')) else 2)
        if c.cls == 'vmem' and ps & c.r:
            n = max(n, 5)
        if c.cls in ('salu', 'smem') and ps & c.r and not c.op.startswith('s_cbranch'):
            n = max(n, 2)
    elif p.cls == 'mfma':
        big = p.passes == 8
        if c.cls == 'mfma':
            if p.w & (c.a | c.b):
                n = max(n, 12 if big else 8)
            if p.w & c.c and not (p.w == c.c and p.passes == c.passes):
                n = max(n, 10 if big else 6)
            if p.w & c.w and not (p.w & c.c):
                n = max(n, 10 if big else 6)
        elif c.cls in ('valu', 'ds', 'vmem'):
            if p.w & (c.r | c.w):
                n = max(n, 12 if big else 8)
            if c.cls == 'valu' and p.c & c.w:
                n = max(n, 7 if big else 3)
    elif p.cls == 'vmem':
        if p.wide_store & c.w:
            n = max(n, 2)
    elif p.cls == 'salu':
        if ('s', 'm0') in p.w and c.ldsdma:
            n = max(n, 1)
    return n


class Asm:
    def __init__(self):
        self.lines = []
        self.hist = []
        self.snap = {}
        self.nops = 0
        self.uid = 0

    def raw(self, s):
        self.lines.append(s)

    def cm(self, s):
        self.lines.append('    ; ' + s)

    def _adv(self, n):
        for h in self.hist:
            h[1] += n
        self.hist = [h for h in self.hist if h[1] < 16]

    def __call__(self, text):
        for t in text.split('\n'):
            t = t.strip()
            if not t:
                continue
            ins = Ins(t)
            n = 0
            for p, d in self.hist:
                n = max(n, need(p, ins) - d)
            if n > 0:
                self.lines.append('    s_nop %d' % (n - 1))
                self.nops += 1
                self._adv(n)
            self.lines.append('    ' + t)
            self._adv(ins.states)
            self.hist.append([ins, 0])
            if ins.op.startswith(('s_cbranch', 's_branch')):
                lab = ins.ops[0]
                self.snap.setdefault(lab, []).extend([[p, d] for p, d in self.hist])
                if ins.op == 's_branch':
                    self.hist = []

    def label(self, lab):
        self.lines.append(lab + ':')
        for p, d in self.snap.pop(lab, []):
            self.hist.append([p, d])

    def newlab(self, base='L'):
        self.uid += 1
        return '%s_%d' % (base, self.uid)

    def text(self):
        return '\n'.join(self.lines) + '\n'


def v(i, n=1):
    return 'v%d' % i if n == 1 else 'v[%d:%d]' % (i, i + n - 1)


def a(i, n=1):
    return 'a%d' % i if n == 1 else 'a[%d:%d]' % (i, i + n - 1)


def s(i, n=1):
    return 's%d' % i if n == 1 else 's[%d:%d]' % (i, i + n - 1)
```

```python
import sys
from asmb import Asm, v, a, s

NAME = 'adaLN_cond__linear_kernel_hedgehog__dense_activation_relu__prompt'

WS_HELLO = 0x1000
WS_MOD = 0x10000
WS_KV = 0x20000
WS_TS = 0x180000
WS_G0 = 0x200000
WS_GSTRIDE = 0x100000
G_H1, G_O, G_Y, G_STAT, G_HH, G_FLAG = 0x0, 0x20000, 0x40000, 0x60000, 0x80000, 0xE0000
SEG = [0, 32768, 65536]
S0 = 0
WBASE = 65536
U15 = 15 * 1024

LOG2E = 0x3fb8aa3b


class Cnt:
    def __init__(self, A, name, mx):
        self.A, self.name, self.mx = A, name, mx
        self.q = []

    def issue(self, tag=None):
        self.q.append(tag)

    def wait(self, tag):
        idx = [i for i, t in enumerate(self.q) if t == tag]
        if not idx:
            return
        n = len(self.q) - 1 - idx[-1]
        n = min(n, self.mx)
        self.A('s_waitcnt %s(%d)' % (self.name, n))
        self.q = self.q[len(self.q) - n:] if n else []

    def wait0(self):
        self.A('s_waitcnt %s(0)' % self.name)
        self.q = []

    def clear(self):
        self.q = []


def gen(debug=False, opts=None):
    o = dict(hdepth=8, ydepth=8, stop=None)
    o.update(opts or {})
    A = Asm()
    VM = Cnt(A, 'vmcnt', 63)
    LG = Cnt(A, 'lgkmcnt', 15)

    pX, pWQKV, pWPHI, pWO, pW1, pW2, pC, pWMOD, pOUT, pWS = 4, 6, 8, 10, 14, 16, 18, 20, 22, 26
    rX, rWQKV, rWO, rW1, rW2, rWMOD, rWS, rG, rOUT = 28, 32, 36, 40, 44, 48, 52, 56, 48
    sX, sJ, sR, sC, sW, sN, sPure, sCnt, sSW, sL2E, sPerm, sMaskHi = 60, 61, 62, 63, 64, 65, 66, 67, 68, 69, 70, 71
    sT = [72, 73, 74, 75, 76, 77, 78, 79]
    sT2 = 80
    sPermHi = 82
    sXcc = 83
    TS0 = 84
    ts_idx = [0]

    def vm(text, tag=None):
        A(text)
        VM.issue(tag)

    def ds(text, tag=None):
        A(text)
        LG.issue(tag)

    vL, vL16, vTS0, vTS1, vDS, vTSV = 0, 1, 2, 3, 4, 5
    vA, vB, vC_, vD = 6, 7, 8, 9
    def stamp(name):
        if not debug:
            return
        i = ts_idx[0]
        ts_idx[0] += 1
        STAMPS.append(name)
        A('s_memtime s[%d:%d]' % (TS0, TS0 + 1))
        A('s_waitcnt lgkmcnt(0)')
        LG.clear()
        A('v_writelane_b32 %s, s%d, %d' % (v(vTSV), TS0, i))

    def srd(r, p, nbytes):
        A('s_mov_b32 s%d, s%d' % (r, p))
        A('s_mov_b32 s%d, s%d' % (r + 1, p + 1))
        A('s_mov_b32 s%d, 0x%x' % (r + 2, nbytes))
        A('s_mov_b32 s%d, 0x00020000' % (r + 3))

    def dma(r, voff, sbase, goff, lbase, loff, tag):
        A('s_add_u32 m0, s%d, 0x%x' % (lbase, loff))
        A('s_add_u32 s%d, s%d, 0x%x' % (sT[7], sbase, goff))
        vm('buffer_load_dwordx4 %s, %s, s%d offen lds' % (v(voff), s(r, 4), sT[7]), tag)

    def poll(body, name):
        L, D = A.newlab('poll_' + name), A.newlab('done_' + name)
        A.label(L)
        A('s_nop 4')
        body()
        A('s_cbranch_vccz %s' % D)
        A('s_sub_u32 s%d, s%d, 1' % (sCnt, sCnt))
        A('s_cbranch_scc0 %s' % L)
        A('s_endpgm')
        A.label(D)

    def dual(emit):
        L1, L2 = A.newlab('imp'), A.newlab('join')
        A('s_cmp_eq_u32 s%d, 0' % sPure)
        A('s_cbranch_scc1 %s' % L1)
        q0 = list(VM.q)
        emit('')
        A('s_branch %s' % L2)
        A.label(L1)
        VM.q = q0
        emit(' sc1')
        A.label(L2)

    def publish(stores, phase):
        def emit(sc):
            for op, d, vo, so, imm in stores:
                vm('%s %s, %s, %s, s%d offen offset:%d%s' % (op, d, v(vo), s(rG, 4), so, imm, sc))
            A('s_mov_b64 exec, 1')
            VM.wait0()
            vm('buffer_store_dword %s, off, %s, s%d offset:%d%s' % (v(vD), s(rG, 4), sT[6], phase * 256, sc))
            A('s_mov_b64 exec, -1')
        A('s_lshl_b32 s%d, s%d, 2' % (sT[6], sC))
        A('s_add_u32 s%d, s%d, s%d' % (sT[6], sT[6], sW))
        A('s_lshl_b32 s%d, s%d, 2' % (sT[6], sT[6]))
        A('s_add_u32 s%d, s%d, 0x%x' % (sT[6], sT[6], G_FLAG))
        A('v_mov_b32 %s, s%d' % (v(vD), sN))
        dual(emit)

    def flagpoll(vaddr, phase, name):
        A('s_mov_b32 s%d, 0x%x' % (sT[6], G_FLAG + phase * 256))
        def body():
            A('buffer_load_dword %s, %s, %s, s%d offen sc1' % (v(vD), v(vaddr), s(rG, 4), sT[6]))
            VM.wait0()
            A('v_cmp_ne_u32 vcc, s%d, %s' % (sN, v(vD)))
        poll(body, name)

    def mfma(d, x, y, c):
        A('v_mfma_f32_32x32x16_bf16 %s, %s, %s, %s' % (d, x, y, c))

    def barrier():
        LG.wait0()
        A('s_barrier')

    units = [('wo', u) for u in range(16)] + [('w2', u) for u in range(44)]
    rounds = [(0, 15, 0), (15, 27, 0), (27, 42, 0), (42, 45, 12), (45, 60, 0)]
    sWOb, sW2b = 12, 13

    def stage_issue(rn):
        f, l, s0 = rounds[rn]
        out = []
        for i in range(f, l):
            m, u = units[i]
            out.append((rWO if m == 'wo' else rW2, vDS, sWOb if m == 'wo' else sW2b, u * 8192, sSW, (s0 + i - f) * 1024, 'R%d' % rn))
        return out

    def stage_convert(rn):
        f, l, s0 = rounds[rn]
        VM.wait('R%d' % rn)
        for i in range(f, l):
            m, u = units[i]
            base = (0 if m == 'wo' else 64) + (u >> 1) * 8 + 2 * (u & 1)
            for tn in range(2):
                ds('ds_read_b64_tr_b16 %s, %s offset:%d' % (a(base + 4 * tn, 2), v(vTS0 + tn), (s0 + i - f) * 1024))
        LG.wait0()

    def halfsum_pair(x, y, op, post=None):
        A('v_permlane32_swap_b32 %s, %s' % (v(x), v(y)))
        A('%s %s, %s, %s' % (op, v(x), v(x), v(y)))
        if post:
            post(x)
        A('v_mov_b32 %s, %s' % (v(y), v(x)))
        A('v_permlane32_swap_b32 %s, %s' % (v(x), v(y)))

    def softmax_pm(P, E, T, OUT):
        mx0, mx1, mn0, mn1 = T, T + 1, T + 2, T + 3
        for hd, (mx, mn) in enumerate(((mx0, mn0), (mx1, mn1))):
            p = P + 8 * hd
            for r, op3, op2 in ((mx, 'v_max3_f32', 'v_max_f32'), (mn, 'v_min3_f32', 'v_min_f32')):
                A('%s %s, %s, %s, %s' % (op3, v(r), v(p), v(p + 1), v(p + 2)))
                A('%s %s, %s, %s, %s' % (op3, v(r), v(r), v(p + 3), v(p + 4)))
                A('%s %s, %s, %s, %s' % (op3, v(r), v(r), v(p + 5), v(p + 6)))
                A('%s %s, %s, %s' % (op2, v(r), v(r), v(p + 7)))
        sc = lambda x: A('v_mul_f32 %s, s%d, %s' % (v(x), sL2E, v(x)))
        halfsum_pair(mx0, mx1, 'v_max_f32', sc)
        halfsum_pair(mn0, mn1, 'v_min_f32', sc)
        for hd, (mx, mn) in enumerate(((mx0, mn0), (mx1, mn1))):
            for i in range(8):
                A('v_fma_f32 %s, %s, s%d, -%s' % (v(E + 16 * hd + i), v(P + 8 * hd + i), sL2E, v(mx)))
                A('v_fma_f32 %s, -%s, s%d, %s' % (v(E + 16 * hd + 8 + i), v(P + 8 * hd + i), sL2E, v(mn)))
        for i in range(32):
            A('v_exp_f32 %s, %s' % (v(E + i), v(E + i)))
        for g in range(4):
            e = E + 8 * g
            t = P + 4 * g
            A('v_pk_add_f32 %s, %s, %s' % (v(t, 2), v(e, 2), v(e + 2, 2)))
            A('v_pk_add_f32 %s, %s, %s' % (v(t + 2, 2), v(e + 4, 2), v(e + 6, 2)))
        for g in range(4):
            t = P + 4 * g
            A('v_pk_add_f32 %s, %s, %s' % (v(t, 2), v(t, 2), v(t + 2, 2)))
        for g in range(4):
            t = P + 4 * g
            A('v_add_f32 %s, %s, %s' % (v(t), v(t), v(t + 1)))
        rc = lambda x: A('v_rcp_f32 %s, %s' % (v(x), v(x)))
        halfsum_pair(P, P + 4, 'v_add_f32', rc)
        halfsum_pair(P + 8, P + 12, 'v_add_f32', rc)
        for g in range(4):
            e = E + 8 * g
            t = P + 4 * g
            for i in range(4):
                A('v_pk_mul_f32 %s, %s, %s op_sel_hi:[1,0]' % (v(e + 2 * i, 2), v(e + 2 * i, 2), v(t, 2)))
        for g in range(4):
            e = E + 8 * g
            for i in range(4):
                A('v_cvt_pk_bf16_f32 %s, %s, %s' % (v(OUT + 4 * g + i), v(e + 2 * i), v(e + 2 * i + 1)))

    def finish():
        if debug:
            A('s_memrealtime s[%d:%d]' % (TS0, TS0 + 1))
            A('s_waitcnt lgkmcnt(0)')
            A('v_writelane_b32 %s, s%d, 62' % (v(vTSV), TS0))
            A('v_writelane_b32 %s, s%d, 61' % (v(vTSV), sPure))
            A('s_lshl_b32 s%d, s2, 2' % sT[0])
            A('s_add_u32 s%d, s%d, s%d' % (sT[0], sT[0], sW))
            A('s_lshl_b32 s%d, s%d, 8' % (sT[0], sT[0]))
            A('s_add_u32 s%d, s%d, 0x%x' % (sT[0], sT[0], WS_TS))
            A('v_lshlrev_b32 %s, 2, %s' % (v(vA), v(vL)))
            A('buffer_store_dword %s, %s, %s, s%d offen' % (v(vTSV), v(vA), s(rWS, 4), sT[0]))
        L = A.newlab('end')
        A('s_or_b32 s%d, s2, s%d' % (sT[0], sW))
        A('s_cmp_lg_u32 s%d, 0' % sT[0])
        A('s_cbranch_scc1 %s' % L)
        A('v_mov_b32 %s, s%d' % (v(vA), sN))
        A('buffer_store_dword %s, off, %s, 0 sc1' % (v(vA), s(rWS, 4)))
        A.label(L)
        A('s_endpgm')

    A('s_load_dwordx16 s[4:19], s[0:1], 0')
    A('s_load_dwordx8 s[20:27], s[0:1], 64')
    A('s_cmp_ge_u32 s2, 256')
    A('s_cbranch_scc0 L_go')
    A('s_endpgm')
    A.label('L_go')
    if debug:
        A('s_memrealtime s[%d:%d]' % (TS0 + 2, TS0 + 3))
        A('s_memtime s[%d:%d]' % (TS0, TS0 + 1))
    A('v_lshrrev_b32 %s, 6, v0' % v(vA))
    A('v_and_b32 %s, 63, v0' % v(vL))
    A('s_and_b32 s%d, s2, 7' % sX)
    A('v_readfirstlane_b32 s%d, %s' % (sW, v(vA)))
    A('s_lshr_b32 s%d, s2, 3' % sJ)
    A('s_lshr_b32 s%d, s%d, 4' % (sR, sJ))
    A('s_lshl_b32 s%d, s%d, 1' % (sT[0], sX))
    A('s_add_u32 s%d, s%d, s%d' % (sR, sR, sT[0]))
    A('s_and_b32 s%d, s%d, 15' % (sC, sJ))
    A('v_lshlrev_b32 %s, 4, %s' % (v(vL16), v(vL)))
    A('s_mov_b32 s%d, 0x%x' % (sL2E, LOG2E))
    A('s_mov_b32 s%d, 0x05040100' % sPerm)
    A('s_mov_b32 s%d, 0x07060302' % sPermHi)
    A('s_mov_b32 s%d, 0xffff0000' % sMaskHi)
    A('s_mov_b32 s%d, 0x20000' % sCnt)
    A('s_lshl_b32 s%d, s%d, 14' % (sSW, sW))
    A('s_getreg_b32 s%d, hwreg(HW_REG_XCC_ID, 0, 4)' % sXcc)
    WM = 16
    CC = 32
    XR = 36
    WPH = 248
    IDN = 240
    A('v_lshrrev_b32 %s, 1, %s' % (v(vA), v(vL)))
    A('v_lshlrev_b32 %s, 2, %s' % (v(vA), v(vA)))
    A('s_lshl_b32 s%d, s%d, 7' % (sT[0], sW))
    A('v_add_u32 %s, s%d, %s' % (v(vA), sT[0], v(vA)))
    A('v_lshlrev_b32 %s, 1, %s' % (v(vB), v(vA)))
    A('v_mul_u32_u24 %s, 0x1800, %s' % (v(vA), v(vA)))
    A('v_and_b32 %s, 1, %s' % (v(vC_), v(vL)))
    A('v_lshl_add_u32 %s, %s, 4, %s' % (v(vA), v(vC_), v(vA)))
    sCG = sT[1]
    A('s_lshr_b32 s%d, s%d, 2' % (sCG, sJ))
    A('s_lshl_b32 s%d, s%d, 3' % (sCG, sCG))
    A('s_add_u32 s%d, s%d, s%d' % (sCG, sCG, sX))
    A('s_lshl_b32 s%d, s%d, 2' % (sCG, sCG))
    A('s_and_b32 s%d, s%d, 3' % (sT[0], sJ))
    A('s_add_u32 s%d, s%d, s%d' % (sCG, sCG, sT[0]))
    A('s_lshl_b32 s%d, s%d, 5' % (sT[2], sCG))
    A('s_add_u32 s%d, s%d, 6144' % (sT[3], sT[2]))
    A('s_add_u32 s%d, s%d, %d' % (sT[4], sT[2], 2 * 6144))
    A('s_add_u32 s%d, s%d, %d' % (sT[5], sT[2], 3 * 6144))
    A('s_waitcnt lgkmcnt(0)')
    if debug:
        A('v_writelane_b32 %s, s%d, 0' % (v(vTSV), TS0))
        A('v_writelane_b32 %s, s%d, 63' % (v(vTSV), TS0 + 2))
        ts_idx[0] = 1
        STAMPS.append('start')
    A('s_load_dword s%d, s[%d:%d], 0' % (sN, pWS, pWS + 1))
    srd(rWMOD, pWMOD, 512 * 6144)
    A('s_cmp_ge_u32 s%d, 24' % sJ)
    A('s_cbranch_scc1 L_nomodld')
    vm('global_load_dwordx2 %s, %s, s[%d:%d]' % (v(CC, 2), v(vB), pC, pC + 1), 'c')
    for i in range(4):
        vm('buffer_load_dwordx4 %s, %s, %s, s%d offen' % (v(WM + 4 * i, 4), v(vA), s(rWMOD, 4), sT[2 + i]), 'wm%d' % i)
    A.label('L_nomodld')
    srd(rX, pX, 2048 * 1024)
    A('v_and_b32 %s, 7, %s' % (v(vA), v(vL)))
    A('v_lshlrev_b32 %s, 10, %s' % (v(vA), v(vA)))
    A('v_lshrrev_b32 %s, 3, %s' % (v(vB), v(vL)))
    A('v_lshl_add_u32 %s, %s, 4, %s' % (v(vA), v(vB), v(vA)))
    A('s_lshl_b32 s%d, s%d, 4' % (sT[0], sR))
    A('s_add_u32 s%d, s%d, s%d' % (sT[0], sT[0], sC))
    A('s_lshl_b32 s%d, s%d, 13' % (sT[0], sT[0]))
    A('s_lshl_b32 s%d, s%d, 8' % (sT[2], sW))
    A('s_add_u32 s%d, s%d, s%d' % (sT[0], sT[0], sT[2]))
    for i in range(2):
        vm('buffer_load_dwordx4 %s, %s, %s, s%d offen offset:%d' % (v(XR + 4 * i, 4), v(vA), s(rX, 4), sT[0], 128 * i), 'x')
    srd(rWQKV, pWQKV, 512 * 3072)
    A('v_lshrrev_b32 %s, 2, %s' % (v(vA), v(vL)))
    A('v_mul_u32_u24 %s, 0xc00, %s' % (v(vA), v(vA)))
    A('v_and_b32 %s, 3, %s' % (v(vB), v(vL)))
    A('v_lshl_add_u32 %s, %s, 4, %s' % (v(vA), v(vB), v(vA)))
    A('s_mul_i32 s%d, s%d, %d' % (sT[0], sW, 128 * 3072))
    A('s_lshl_b32 s%d, s%d, 6' % (sT[2], sC))
    A('s_add_u32 s%d, s%d, s%d' % (sT[0], sT[0], sT[2]))
    A('s_lshl_b32 s%d, s%d, 13' % (sT[2], sW))
    for seg, gcol in ((0, 1024), (1, 2048), (2, 0)):
        for p in range(8):
            dma(rWQKV, vA, sT[0], p * 16 * 3072 + gcol, sT[2], WBASE + SEG[seg] + p * 1024, 'W')
    A('v_and_b32 %s, 15, %s' % (v(vA), v(vL)))
    A('v_lshlrev_b32 %s, 1, %s' % (v(vA), v(vA)))
    A('v_bfe_u32 %s, %s, 4, 1' % (v(vB), v(vL)))
    A('v_lshl_add_u32 %s, %s, 9, %s' % (v(vA), v(vB), v(vA)))
    A('v_lshrrev_b32 %s, 5, %s' % (v(vB), v(vL)))
    A('v_lshl_add_u32 %s, %s, 7, %s' % (v(vA), v(vB), v(vA)))
    A('s_lshl_b32 s%d, s%d, 10' % (sT[0], sC))
    A('v_add_u32 %s, s%d, %s' % (v(vA), sT[0], v(vA)))
    for i in range(8):
        d = i if i < 4 else i + 4
        vm('global_load_ushort %s, %s, s[%d:%d] offset:%d' % (v(WPH + i), v(vA), pWPHI, pWPHI + 1, d * 32), 'wphi')
    srd(rWO, pWO, 512 * 1024)
    srd(rW2, pW2, 1376 * 1024)
    srd(rW1, pW1, 512 * 2752)
    A('v_lshrrev_b32 %s, 3, %s' % (v(vDS), v(vL)))
    A('v_lshlrev_b32 %s, 10, %s' % (v(vDS), v(vDS)))
    A('v_bfe_u32 %s, %s, 4, 1' % (v(vA), v(vL)))
    A('v_lshlrev_b32 %s, 2, %s' % (v(vA), v(vA)))
    A('v_and_b32 %s, 7, %s' % (v(vB), v(vL)))
    A('v_xor_b32 %s, %s, %s' % (v(vA), v(vA), v(vB)))
    A('v_lshl_add_u32 %s, %s, 4, %s' % (v(vDS), v(vA), v(vDS)))
    A('s_and_b32 s%d, s%d, 7' % (sT[0], sC))
    A('s_lshl_b32 s%d, s%d, 7' % (sT[0], sT[0]))
    A('s_lshl_b32 s%d, s%d, 17' % (sWOb, sW))
    A('s_add_u32 s%d, s%d, s%d' % (sWOb, sWOb, sT[0]))
    A('s_mul_i32 s%d, s%d, %d' % (sW2b, sW, 352 * 1024))
    A('s_add_u32 s%d, s%d, s%d' % (sW2b, sW2b, sT[0]))
    for t in stage_issue(0):
        dma(*t)
    srd(rWS, pWS, WS_G0)
    A('s_lshl_b32 s%d, s%d, 20' % (sT[0], sR))
    A('s_add_u32 s%d, s%d, 0x%x' % (sT[0], sT[0], WS_G0))
    A('s_add_u32 s%d, s%d, s%d' % (rG, pWS, sT[0]))
    A('s_addc_u32 s%d, s%d, 0' % (rG + 1, pWS + 1))
    A('s_mov_b32 s%d, 0x%x' % (rG + 2, WS_GSTRIDE))
    A('s_mov_b32 s%d, 0x00020000' % (rG + 3))
    A('s_waitcnt lgkmcnt(0)')
    A('s_add_u32 s%d, s%d, 1' % (sN, sN))
    A('s_cmp_lg_u32 s%d, 0' % sW)
    A('s_cbranch_scc1 L_nohello')
    A('v_mov_b32 %s, s%d' % (v(vA), sN))
    A('v_mov_b32 %s, s%d' % (v(vB), sXcc))
    A('s_lshl_b32 s%d, s2, 7' % sT[0])
    A('s_add_u32 s%d, s%d, 0x%x' % (sT[0], sT[0], WS_HELLO))
    A('s_mov_b64 exec, 1')
    A('buffer_store_dwordx2 %s, off, %s, s%d sc1' % (v(vA, 2), s(rWS, 4), sT[0]))
    A('s_mov_b64 exec, -1')
    A.label('L_nohello')
    A('v_lshrrev_b32 %s, 5, %s' % (v(vA), v(vL)))
    A('v_bfe_u32 %s, %s, 2, 2' % (v(vB), v(vL)))
    A('v_lshl_add_u32 %s, %s, 2, %s' % (v(vA), v(vA), v(vB)))
    A('v_lshlrev_b32 %s, 7, %s' % (v(vTS0), v(vA)))
    A('v_bfe_u32 %s, %s, 3, 1' % (v(vA), v(vL)))
    A('s_lshr_b32 s%d, s%d, 1' % (sT[0], sW))
    A('v_xor_b32 %s, s%d, %s' % (v(vA), sT[0], v(vA)))
    A('v_lshl_add_u32 %s, %s, 6, %s' % (v(vTS0), v(vA), v(vTS0)))
    A('v_bfe_u32 %s, %s, 4, 1' % (v(vA), v(vL)))
    A('v_lshlrev_b32 %s, 5, %s' % (v(vA), v(vA)))
    A('v_and_b32 %s, 3, %s' % (v(vB), v(vL)))
    vG8 = 10
    A('v_lshl_add_u32 %s, %s, 3, %s' % (v(vG8), v(vB), v(vA)))
    A('v_add3_u32 %s, %s, %s, s%d' % (v(vTS0), v(vTS0), v(vG8), sSW))
    A('v_xor_b32 %s, 64, %s' % (v(vTS1), v(vTS0)))
    A('v_and_b32 %s, 31, %s' % (v(vA), v(vL)))
    A('s_lshl_b32 s%d, s%d, 3' % (sT[0], sW))
    A('v_xor_b32 %s, s%d, %s' % (v(vA), sT[0], v(vA)))
    A('v_lshrrev_b32 %s, 5, %s' % (v(vB), v(vL)))
    A('v_lshlrev_b32 %s, 2, %s' % (v(vB), v(vB)))
    A('v_sub_u32 %s, %s, %s' % (v(vA), v(vA), v(vB)))
    A('v_mov_b32 %s, 0x3f80' % v(vB))
    A('v_mov_b32 %s, 0x3f800000' % v(vC_))
    for sg in range(2):
        for jj in range(4):
            i0 = 2 * jj
            f0 = 16 * sg + (i0 if i0 < 4 else i0 + 4)
            r = IDN + 4 * sg + jj
            A('v_cmp_eq_u32 vcc, %d, %s' % (f0, v(vA)))
            A('v_cndmask_b32 %s, 0, %s, vcc' % (v(r), v(vB)))
            A('v_cmp_eq_u32 vcc, %d, %s' % (f0 + 1, v(vA)))
            A('v_cndmask_b32 %s, %s, %s, vcc' % (v(r), v(r), v(vC_)))

    ACC = 48
    SL = 56
    A('s_cmp_ge_u32 s%d, 24' % sJ)
    A('s_cbranch_scc1 L_nomod')
    q_save = list(VM.q)
    VM.wait('c')
    for i in range(4):
        src = CC + (i >> 1)
        if i & 1:
            A('v_and_b32 %s, s%d, %s' % (v(ACC + i), sMaskHi, v(src)))
        else:
            A('v_lshlrev_b32 %s, 16, %s' % (v(ACC + i), v(src)))
    for i in range(4):
        A('v_mul_f32 %s, 0x%x, %s' % (v(ACC + 4 + i), LOG2E ^ 0x80000000, v(ACC + i)))
    for i in range(4):
        A('v_exp_f32 %s, %s' % (v(ACC + 4 + i), v(ACC + 4 + i)))
    for i in range(4):
        A('v_add_f32 %s, 1.0, %s' % (v(ACC + 4 + i), v(ACC + 4 + i)))
    for i in range(4):
        A('v_rcp_f32 %s, %s' % (v(ACC + 4 + i), v(ACC + 4 + i)))
    for i in range(4):
        A('v_mul_f32 %s, %s, %s' % (v(ACC + i), v(ACC + i), v(ACC + 4 + i)))
    for i in range(4):
        A('v_cvt_pk_bf16_f32 %s, %s, 0' % (v(SL + i), v(ACC + i)))
        A('v_cvt_pk_bf16_f32 %s, 0, %s' % (v(SL + 4 + i), v(ACC + i)))
    for i in range(4):
        VM.wait('wm%d' % i)
        for jj in range(4):
            for hi in range(2):
                d = ACC + 2 * jj + hi
                A('v_dot2_f32_bf16 %s, %s, %s, %s' % (v(d), v(WM + 4 * i + jj), v(SL + 4 * hi + i), '0' if i == 0 else v(d)))
    for rr in (2, 4, 8):
        for d in range(8):
            A('v_add_f32_dpp %s, %s, %s row_ror:%d row_mask:0xf bank_mask:0xf' % (v(ACC + d), v(ACC + d), v(ACC + d), rr))
    A('v_lshrrev_b32 %s, 4, %s' % (v(vA), v(vL)))
    A('v_lshlrev_b32 %s, 6, %s' % (v(vA), v(vA)))
    A('v_and_b32 %s, 1, %s' % (v(vB), v(vL)))
    A('v_lshl_add_u32 %s, %s, 5, %s' % (v(vA), v(vB), v(vA)))
    A('v_add_u32 %s, s%d, %s' % (v(vA), sSW, v(vA)))
    A('s_mov_b32 exec_lo, 0x00030003')
    A('s_mov_b32 exec_hi, 0x00030003')
    ds('ds_write_b128 %s, %s offset:%d' % (v(vA), v(ACC, 4), U15))
    ds('ds_write_b128 %s, %s offset:%d' % (v(vA), v(ACC + 4, 4), U15 + 16))
    A('s_mov_b64 exec, -1')
    A.label('L_nomod')
    VM.q = q_save
    XF = 64
    VM.wait('x')
    for i in range(8):
        A('v_lshlrev_b32 %s, 16, %s' % (v(XF + 2 * i), v(XR + i)))
        A('v_and_b32 %s, s%d, %s' % (v(XF + 2 * i + 1), sMaskHi, v(XR + i)))
    S1, S2 = 80, 82
    A('v_pk_add_f32 %s, %s, %s' % (v(S1, 2), v(XF, 2), v(XF + 2, 2)))
    A('v_pk_mul_f32 %s, %s, %s' % (v(S2, 2), v(XF, 2), v(XF, 2)))
    A('v_pk_fma_f32 %s, %s, %s, %s' % (v(S2, 2), v(XF + 2, 2), v(XF + 2, 2), v(S2, 2)))
    for i in range(2, 8):
        A('v_pk_add_f32 %s, %s, %s' % (v(S1, 2), v(S1, 2), v(XF + 2 * i, 2)))
        A('v_pk_fma_f32 %s, %s, %s, %s' % (v(S2, 2), v(XF + 2 * i, 2), v(XF + 2 * i, 2), v(S2, 2)))
    A('v_add_f32 %s, %s, %s' % (v(S1), v(S1), v(S1 + 1)))
    A('v_add_f32 %s, %s, %s' % (v(S1 + 1), v(S2), v(S2 + 1)))
    for r in (S1, S1 + 1):
        A('v_add_f32_dpp %s, %s, %s row_ror:8 row_mask:0xf bank_mask:0xf' % (v(r), v(r), v(r)))
    for sw in ('v_permlane16_swap_b32', 'v_permlane32_swap_b32'):
        A('v_mov_b32 %s, %s' % (v(S2), v(S1)))
        A('v_mov_b32 %s, %s' % (v(S2 + 1), v(S1 + 1)))
        A('%s %s, %s' % (sw, v(S1), v(S2)))
        A('%s %s, %s' % (sw, v(S1 + 1), v(S2 + 1)))
        A('v_pk_add_f32 %s, %s, %s' % (v(S1, 2), v(S1, 2), v(S2, 2)))
    A('v_and_b32 %s, 7, %s' % (v(vA), v(vL)))
    A('v_lshlrev_b32 %s, 3, %s' % (v(vA), v(vA)))
    A('v_add_u32 %s, s%d, %s' % (v(vB), sSW, v(vA)))
    A('s_mov_b64 exec, 0xff')
    ds('ds_write_b64 %s, %s offset:%d' % (v(vB), v(S1, 2), U15 + 256))
    A('s_mov_b64 exec, -1')
    stamp('preB1')
    barrier()
    A('s_cmp_ge_u32 s%d, 24' % sJ)
    A('s_cbranch_scc1 L_nopub')
    A('s_cmp_lg_u32 s%d, 0' % sW)
    A('s_cbranch_scc1 L_nopub')
    A('v_lshrrev_b32 %s, 4, %s' % (v(vB), v(vL)))
    A('v_lshlrev_b32 %s, 14, %s' % (v(vB), v(vB)))
    A('v_and_b32 %s, 15, %s' % (v(vC_), v(vL)))
    A('v_lshlrev_b32 %s, 2, %s' % (v(vC_), v(vC_)))
    A('v_add3_u32 %s, %s, %s, s%d' % (v(vB), v(vB), v(vC_), sSW))
    for i in range(4):
        A('ds_read_b32 %s, %s offset:%d' % (v(ACC + i), v(vB), U15 + 64 * i))
    A('s_lshr_b32 s%d, s%d, 2' % (sT[0], sJ))
    A('s_mov_b32 s%d, 0' % sT[2])
    A('s_cmp_eq_u32 s%d, 1' % sT[0])
    A('s_cselect_b32 s%d, 1.0, s%d' % (sT[2], sT[2]))
    A('s_cmp_eq_u32 s%d, 4' % sT[0])
    A('s_cselect_b32 s%d, 1.0, s%d' % (sT[2], sT[2]))
    A('s_lshl_b32 s%d, s%d, 7' % (sT[3], sCG))
    A('s_add_u32 s%d, s%d, 0x%x' % (sT[3], sT[3], WS_MOD))
    A('v_and_b32 %s, 1, %s' % (v(vD), v(vL)))
    A('v_lshlrev_b32 %s, 4, %s' % (v(vD), v(vD)))
    A('v_lshrrev_b32 %s, %s, s%d' % (v(vD), v(vD), sN))
    A('s_waitcnt lgkmcnt(0)')
    A('v_add_f32 %s, %s, %s' % (v(ACC), v(ACC), v(ACC + 1)))
    A('v_add_f32 %s, %s, %s' % (v(ACC + 2), v(ACC + 2), v(ACC + 3)))
    A('v_add_f32 %s, %s, %s' % (v(ACC), v(ACC), v(ACC + 2)))
    for sw in ('v_permlane16_swap_b32', 'v_permlane32_swap_b32'):
        A('v_mov_b32 %s, %s' % (v(ACC + 1), v(ACC)))
        A('%s %s, %s' % (sw, v(ACC), v(ACC + 1)))
        A('v_add_f32 %s, %s, %s' % (v(ACC), v(ACC), v(ACC + 1)))
    A('v_cvt_pk_bf16_f32 %s, 0, %s' % (v(ACC), v(ACC)))
    A('v_add_f32 %s, s%d, %s' % (v(ACC), sT[2], v(ACC)))
    A('v_cvt_pk_bf16_f32 %s, %s, %s' % (v(ACC), v(ACC), v(ACC)))
    A('v_perm_b32 %s, %s, %s, s%d' % (v(ACC), v(ACC), v(vD), sPerm))
    A('s_mov_b64 exec, 0xffff')
    A('buffer_store_dword %s, %s, %s, s%d offen sc1' % (v(ACC), v(vC_), s(rWS, 4), sT[3]))
    A('s_mov_b64 exec, -1')
    A.label('L_nopub')
    stamp('modpub')
    A('v_add_u32 %s, 0x%x, %s' % (v(vA), S0 + U15 + 256, v(vA)))
    ST = 84
    for wv in range(4):
        ds('ds_read_b64 %s, %s offset:%d' % (v(ST + 2 * wv, 2), v(vA), wv * 16384))
    LG.wait0()
    A('v_pk_add_f32 %s, %s, %s' % (v(ST, 2), v(ST, 2), v(ST + 2, 2)))
    A('v_pk_add_f32 %s, %s, %s' % (v(ST + 4, 2), v(ST + 4, 2), v(ST + 6, 2)))
    A('v_pk_add_f32 %s, %s, %s' % (v(ST, 2), v(ST, 2), v(ST + 4, 2)))
    A('v_mul_f32 %s, 0x3b000000, %s' % (v(ST), v(ST)))
    A('v_mul_f32 %s, 0x3b000000, %s' % (v(ST + 1), v(ST + 1)))
    A('v_fma_f32 %s, -%s, %s, %s' % (v(ST + 1), v(ST), v(ST), v(ST + 1)))
    A('v_max_f32 %s, 0, %s' % (v(ST + 1), v(ST + 1)))
    A('v_add_f32 %s, 0x3727c5ac, %s' % (v(ST + 1), v(ST + 1)))
    A('v_rsq_f32 %s, %s' % (v(ST + 2), v(ST + 1)))
    A('v_mul_f32 %s, %s, %s' % (v(ST + 4), v(ST), v(ST + 2)))
    for i in range(8):
        A('v_pk_fma_f32 %s, %s, %s, %s op_sel_hi:[1,0,0] neg_lo:[0,0,1] neg_hi:[0,0,1]' % (v(XF + 2 * i, 2), v(XF + 2 * i, 2), v(ST + 2, 2), v(ST + 4, 2)))
    VM.wait('wphi')
    A('v_bfe_u32 %s, %s, 4, 1' % (v(vA), v(vL)))
    A('v_cmp_eq_u32 vcc, 0, %s' % v(vA))
    for i in range(4):
        A('v_lshl_or_b32 %s, %s, 16, %s' % (v(WPH + i), v(WPH + 2 * i + 1), v(WPH + 2 * i)))
    for i in range(4):
        A('v_cndmask_b32 %s, %s, 0, vcc' % (v(WPH + 4 + i), v(WPH + i)))
    for i in range(4):
        A('v_cndmask_b32 %s, 0, %s, vcc' % (v(WPH + i), v(WPH + i)))
    stage_convert(0)
    stamp('cvt0')
    MD = 88
    HL = 92
    A('v_lshrrev_b32 %s, 5, %s' % (v(vA), v(vL)))
    A('v_lshlrev_b32 %s, 5, %s' % (v(vA), v(vA)))
    A('v_bfe_u32 %s, %s, 2, 3' % (v(vB), v(vL)))
    A('v_add_u32 %s, %s, %s' % (v(vA), v(vA), v(vB)))
    A('v_lshlrev_b32 %s, 7, %s' % (v(vA), v(vA)))
    A('v_and_b32 %s, 3, %s' % (v(vB), v(vL)))
    A('v_lshl_add_u32 %s, %s, 4, %s' % (v(vA), v(vB), v(vA)))
    A('s_lshl_b32 s%d, s%d, 10' % (sT[0], sW))
    A('s_add_u32 s%d, s%d, 0x%x' % (sT[0], sT[0], WS_MOD))
    A('v_and_b32 %s, 15, %s' % (v(vB), v(vL)))
    A('v_lshlrev_b32 %s, 10, %s' % (v(vB), v(vB)))
    A('s_and_b32 s%d, s2, 0x87' % sT[2])
    A('s_lshl_b32 s%d, s%d, 7' % (sT[2], sT[2]))
    A('s_add_u32 s%d, s%d, 0x%x' % (sT[2], sT[2], WS_HELLO))
    def body():
        A('buffer_load_dwordx2 %s, %s, %s, s%d offen sc1' % (v(HL, 2), v(vB), s(rWS, 4), sT[2]))
        VM.wait0()
        A('v_cmp_ne_u32 vcc, s%d, %s' % (sN, v(HL)))
    poll(body, 'hello')
    A('v_cmp_ne_u32 vcc, s%d, %s' % (sXcc, v(HL + 1)))
    A('s_cmp_eq_u64 vcc, 0')
    A('s_cselect_b32 s%d, 1, 0' % sPure)
    vRW, vRR, vHS = 11, 12, 13
    A('v_add_u32 %s, s%d, %s' % (v(vRW), sSW, v(vL16)))
    A('v_lshrrev_b32 %s, 3, %s' % (v(vB), v(vL)))
    A('v_lshlrev_b32 %s, 5, %s' % (v(vRR), v(vB)))
    A('v_add_u32 %s, s%d, %s' % (v(vRR), sSW, v(vRR)))
    A('v_lshlrev_b32 %s, 9, %s' % (v(vHS), v(vB)))
    A('v_and_b32 %s, 7, %s' % (v(vB), v(vL)))
    A('v_lshl_add_u32 %s, %s, 4, %s' % (v(vHS), v(vB), v(vHS)))
    A('s_lshr_b32 s%d, s%d, 2' % (sT[3], sC))
    A('s_lshl_b32 s%d, s%d, 15' % (sT[3], sT[3]))
    A('s_lshl_b32 s%d, s%d, 13' % (sT[4], sW))
    A('s_add_u32 s%d, s%d, s%d' % (sT[3], sT[3], sT[4]))
    A('s_and_b32 s%d, s%d, 3' % (sT[4], sC))
    A('s_lshl_b32 s%d, s%d, 7' % (sT[4], sT[4]))
    A('s_add_u32 s%d, s%d, s%d' % (sT[3], sT[3], sT[4]))
    A('s_add_u32 s%d, s%d, 4096' % (sT[4], sT[3]))
    def body():
        A('buffer_load_dwordx4 %s, %s, %s, s%d offen sc1' % (v(MD, 4), v(vA), s(rWS, 4), sT[0]))
        VM.wait0()
        A('v_perm_b32 %s, %s, %s, s%d' % (v(HL), v(MD + 1), v(MD), sPerm))
        A('v_perm_b32 %s, %s, %s, s%d' % (v(HL + 1), v(MD + 3), v(MD + 2), sPerm))
        A('v_xor_b32 %s, s%d, %s' % (v(HL), sN, v(HL)))
        A('v_xor_b32 %s, s%d, %s' % (v(HL + 1), sN, v(HL + 1)))
        A('v_or_b32 %s, %s, %s' % (v(HL), v(HL), v(HL + 1)))
        A('v_cmp_ne_u32 vcc, 0, %s' % v(HL))
    poll(body, 'mod')
    stamp('modseen')
    for i in range(4):
        A('v_and_b32 %s, s%d, %s' % (v(MD + i), sMaskHi, v(MD + i)))
    ds('ds_write_b128 %s, %s' % (v(vRW), v(MD, 4)))
    SA, GA = 96, 112
    for i in range(2):
        for hf in range(2):
            ds('ds_read_b128 %s, %s offset:%d' % (v(GA + 8 * i + 4 * hf, 4), v(vRR), 512 + 256 * i + 16 * hf), 'g%d' % i)
            ds('ds_read_b128 %s, %s offset:%d' % (v(SA + 8 * i + 4 * hf, 4), v(vRR), 256 * i + 16 * hf), 'g%d' % i)
    HO = 128
    for i in range(2):
        LG.wait('g%d' % i)
        for jj in range(4):
            k = 8 * i + 2 * jj
            A('v_pk_fma_f32 %s, %s, %s, %s' % (v(XF + k, 2), v(XF + k, 2), v(GA + k, 2), v(SA + k, 2)))
        for jj in range(4):
            k = 8 * i + 2 * jj
            A('v_cvt_pk_bf16_f32 %s, %s, %s' % (v(HO + 4 * i + jj), v(XF + k), v(XF + k + 1)))
    publish([('buffer_store_dwordx4', v(HO, 4), vHS, sT[3], 0), ('buffer_store_dwordx4', v(HO + 4, 4), vHS, sT[4], 0)], 0)
    stamp('hpub')
    A('s_barrier')
    if o['stop'] == 'h':
        finish()
        return A

    HF = 16
    AK, AV = 144, 160
    WB = 176
    vTW = 11
    A('v_lshrrev_b32 %s, 5, %s' % (v(vA), v(vL)))
    A('v_bfe_u32 %s, %s, 2, 2' % (v(vB), v(vL)))
    A('v_lshl_add_u32 %s, %s, 3, %s' % (v(vA), v(vA), v(vB)))
    A('v_lshl_add_u32 %s, %s, 6, %s' % (v(vTW), v(vA), v(vG8)))
    A('v_add_u32 %s, 0x%x, %s' % (v(vTW), WBASE, v(vTW)))
    def wread(ks, segs, base, vaddr, second):
        for si, sg in enumerate(segs):
            for h2 in range(2):
                ds('ds_read_b64_tr_b16 %s, %s offset:%d' % (v(base + 4 * si + 2 * h2, 2), v(vaddr), sg + ks * 1024 + h2 * second), 'w%d_%d' % (ks, si))
    wread(0, SEG[:2], WB, vTW, 256)
    wread(1, SEG[:2], WB + 8, vTW, 256)
    A('v_and_b32 %s, 15, %s' % (v(vA), v(vL)))
    A('s_lshl_b32 s%d, s%d, 4' % (sT[0], sW))
    A('v_add_lshl_u32 %s, %s, s%d, 2' % (v(vA), v(vA), sT[0]))
    A('s_lshl_b32 s%d, s%d, 15' % (sT[0], sW))
    flagpoll(vA, 0, 'h')
    stamp('hseen')
    def fload(dst, region, ks, tag, sb=sT[0]):
        if ks % 4 == 0:
            A('s_add_u32 s%d, s%d, 0x%x' % (sT[5], sb, region + ks * 1024))
        vm('buffer_load_dwordx4 %s, %s, %s, s%d offen offset:%d sc1' % (v(dst, 4), v(vL16), s(rG, 4), sT[5], (ks % 4) * 1024), tag)
    D = o['hdepth']
    for ks in range(D):
        fload(HF + 4 * ks, G_H1, ks, 'h%d' % ks)
    r1 = stage_issue(1)
    for ks in range(32):
        wb = WB + 8 * (ks % 3)
        nb = WB + 8 * ((ks + 2) % 3)
        VM.wait('h%d' % ks)
        LG.wait('w%d_0' % ks)
        mfma(v(AK, 16), v(wb, 4), v(HF + 4 * ks, 4), '0' if ks == 0 else v(AK, 16))
        if ks + 2 < 32:
            wread(ks + 2, SEG[:2], nb, vTW, 256)
        LG.wait('w%d_1' % ks)
        mfma(v(AV, 16), v(HF + 4 * ks, 4), v(wb + 4, 4), '0' if ks == 0 else v(AV, 16))
        if ks + D < 32:
            fload(HF + 4 * (ks + D), G_H1, ks + D, 'h%d' % (ks + D))
        else:
            for _ in range(2):
                if r1:
                    dma(*r1.pop(0))
    while r1:
        dma(*r1.pop(0))
    stamp('loop1')
    KB = 176
    PK = 184
    EE = 200
    TT = 232
    PH = 144
    for i in range(8):
        A('v_cvt_pk_bf16_f32 %s, %s, %s' % (v(KB + i), v(AK + 2 * i), v(AK + 2 * i + 1)))
    mfma(v(PK, 16), v(WPH, 4), v(KB, 4), '0')
    mfma(v(PK, 16), v(WPH + 4, 4), v(KB + 4, 4), v(PK, 16))
    for i in range(8):
        A('v_cvt_pk_bf16_f32 %s, %s, %s' % (v(AV + i), v(AV + 2 * i), v(AV + 2 * i + 1)))
    A('v_bfe_u32 %s, %s, 4, 1' % (v(vA), v(vL)))
    A('v_cmp_eq_u32 vcc, 0, %s' % v(vA))
    for i in range(8):
        A('v_cndmask_b32 %s, %s, 0, vcc' % (v(AV + 8 + i), v(AV + i)))
    for i in range(8):
        A('v_cndmask_b32 %s, 0, %s, vcc' % (v(AV + i), v(AV + i)))
    softmax_pm(PK, EE, TT, PH)
    TR = 200
    for hd in range(2):
        mfma(v(TR + 16 * hd, 16), v(PH + 8 * hd, 4), v(IDN, 4), '0')
        mfma(v(TR + 16 * hd, 16), v(PH + 8 * hd + 4, 4), v(IDN + 4, 4), v(TR + 16 * hd, 16))
    TP = 176
    KV = 144
    ZZ = 192
    for hd in range(2):
        for i in range(8):
            A('v_cvt_pk_bf16_f32 %s, %s, %s' % (v(TP + 8 * hd + i), v(TR + 16 * hd + 2 * i), v(TR + 16 * hd + 2 * i + 1)))
        for ks in range(2):
            mfma(v(KV, 16), v(TP + 8 * hd + 4 * ks, 4), v(AV + 8 * hd + 4 * ks, 4), '0' if hd == 0 and ks == 0 else v(KV, 16))
    for hd in range(2):
        t = TR + 16 * hd
        for st in (8, 4, 2):
            for i in range(0, st, 2):
                A('v_pk_add_f32 %s, %s, %s' % (v(t + i, 2), v(t + i, 2), v(t + st + i, 2)))
        A('v_add_f32 %s, %s, %s' % (v(ZZ + hd), v(t), v(t + 1)))
    A('v_permlane32_swap_b32 %s, %s' % (v(ZZ), v(ZZ + 1)))
    A('v_add_f32 %s, %s, %s' % (v(ZZ), v(ZZ), v(ZZ + 1)))
    A('s_lshl_b32 s%d, s%d, 3' % (sT[1], sW))
    A('v_xor_b32 %s, s%d, %s' % (v(vA), sT[1], v(vL)))
    A('v_lshl_add_u32 %s, %s, 2, s%d' % (v(vA), v(vA), sSW))
    ds('ds_write_b32 %s, %s offset:%d' % (v(vA), v(ZZ), U15 + 512))
    A('v_add_u32 %s, s%d, %s' % (v(vB), sSW, v(vL16)))
    for g in range(1, 4):
        ds('ds_write_b128 %s, %s offset:%d' % (v(vB), v(KV + 4 * g, 4), (11 + g) * 1024))
    for g in range(1, 4):
        A('v_xor_b32 %s, 0x%x, %s' % (v(12 + g), g << 14, v(vB)))
    A('v_and_b32 %s, 15, %s' % (v(vA), v(vL)))
    A('s_lshl_b32 s%d, s%d, 4' % (sT[1], sW))
    A('v_add_lshl_u32 %s, %s, s%d, 2' % (v(vA), v(vA), sT[1]))
    A('v_add_u32 %s, 0x%x, %s' % (v(vA), S0 + U15 + 512, v(vA)))
    A('s_lshl_b32 s%d, s%d, 16' % (sT[1], sC))
    A('s_lshl_b32 s%d, s%d, 10' % (sT[2], sW))
    A('s_add_u32 s%d, s%d, s%d' % (sT[1], sT[1], sT[2]))
    A('s_add_u32 s%d, s%d, 0x%x' % (sT[1], sT[1], WS_KV))
    A('s_lshl_b32 s%d, s%d, 12' % (sT[2], sR))
    A('s_add_u32 s%d, s%d, s%d' % (sT[2], sT[2], sT[1]))
    barrier()
    RD = 200
    for g in range(1, 4):
        ds('ds_read_b128 %s, %s offset:%d' % (v(RD + 4 * g, 4), v(12 + g), (11 + g) * 1024))
    for wv in range(4):
        ds('ds_read_b32 %s, %s offset:%d' % (v(RD + wv), v(vA), wv * 16384))
    A('v_mov_b32 %s, s%d' % (v(KV + 7), sN))
    LG.wait0()
    for g in range(1, 4):
        A('v_pk_add_f32 %s, %s, %s' % (v(KV, 2), v(KV, 2), v(RD + 4 * g, 2)))
        A('v_pk_add_f32 %s, %s, %s' % (v(KV + 2, 2), v(KV + 2, 2), v(RD + 4 * g + 2, 2)))
    A('v_pk_add_f32 %s, %s, %s' % (v(RD, 2), v(RD, 2), v(RD + 2, 2)))
    A('v_cvt_pk_bf16_f32 %s, %s, %s' % (v(KV + 4), v(KV), v(KV + 1)))
    A('v_cvt_pk_bf16_f32 %s, %s, %s' % (v(KV + 5), v(KV + 2), v(KV + 3)))
    A('v_add_f32 %s, %s, %s' % (v(KV + 6), v(RD), v(RD + 1)))
    vm('buffer_store_dwordx4 %s, %s, %s, s%d offen sc1' % (v(KV + 4, 4), v(vL16), s(rWS, 4), sT[2]))
    stamp('kvpub')
    sKVb = 3
    A('s_mov_b32 s%d, s%d' % (sKVb, sT[1]))
    if o['stop'] == 'kv':
        finish()
        return A
    vDW1 = 12
    sW1b, sLW = sT[1], sT[2]
    A('v_lshrrev_b32 %s, 2, %s' % (v(vA), v(vL)))
    A('v_mul_u32_u24 %s, 0xac0, %s' % (v(vA), v(vA)))
    A('v_and_b32 %s, 3, %s' % (v(vB), v(vL)))
    A('v_lshl_add_u32 %s, %s, 4, %s' % (v(vDW1), v(vB), v(vA)))
    sT0 = 5
    A('s_mul_i32 s%d, s%d, 3' % (sT0, sC))
    A('s_lshl_b32 s%d, s%d, 1' % (sT[3], sC))
    A('s_add_u32 s%d, s%d, 11' % (sT[3], sT[3]))
    A('s_min_u32 s%d, s%d, s%d' % (sT0, sT0, sT[3]))
    A('s_mul_i32 s%d, s%d, %d' % (sW1b, sW, 128 * 2752))
    A('s_lshl_b32 s%d, s%d, 6' % (sT[3], sT0))
    A('s_add_u32 s%d, s%d, s%d' % (sW1b, sW1b, sT[3]))
    A('s_lshl_b32 s%d, s%d, 13' % (sLW, sW))
    w1a = [(rW1, vDW1, sW1b, p * 16 * 2752 + 64 * t, sLW, WBASE + SEG[t] + p * 1024, 'w1') for t in range(2) for p in range(8)]
    w1b = [(rW1, vDW1, sW1b, p * 16 * 2752 + 64 * 2, sLW, WBASE + SEG[2] + p * 1024, 'w1') for p in range(8)]
    AQ = 160
    A('v_add_u32 %s, 0x10000, %s' % (v(vTW), v(vTW)))
    QB = 176
    for ks in range(3):
        wread(ks, [0], QB + 4 * ks, vTW, 256)
    for ks in range(32):
        LG.wait('w%d_0' % ks)
        mfma(v(AQ, 16), v(QB + 4 * (ks % 4), 4), v(HF + 4 * ks, 4), '0' if ks == 0 else v(AQ, 16))
        if ks + 3 < 32:
            wread(ks + 3, [0], QB + 4 * ((ks + 3) % 4), vTW, 256)
        if ks % 2 == 0:
            dma(*w1a.pop(0))
    A('s_barrier')
    for t in w1b:
        dma(*t)
    stamp('qloop')
    stage_convert(1)
    for t in stage_issue(2):
        dma(*t)
    PG = 16
    TB = 64
    XE = 80
    sN0 = 4
    A('s_and_b32 s%d, s%d, 7' % (sN0, sC))
    A('s_lshl_b32 s%d, s%d, 1' % (sN0, sN0))
    A('s_lshr_b32 s%d, s%d, 1' % (sT[3], sW))
    A('s_add_u32 s%d, s%d, s%d' % (sN0, sN0, sT[3]))
    vXO = 13
    sRow = 6
    A('s_lshr_b32 s%d, s%d, 3' % (sRow, sC))
    A('s_lshl_b32 s%d, s%d, 1' % (sRow, sRow))
    A('s_and_b32 s%d, s%d, 1' % (sT[3], sW))
    A('s_add_u32 s%d, s%d, s%d' % (sRow, sRow, sT[3]))
    A('s_lshl_b32 s%d, s%d, 2' % (sT[3], sR))
    A('s_add_u32 s%d, s%d, s%d' % (sT[3], sT[3], sRow))
    A('s_lshl_b32 s%d, s%d, 15' % (sT[3], sT[3]))
    A('s_lshl_b32 s%d, s%d, 6' % (sT[4], sN0))
    sXO = 7
    A('s_add_u32 s%d, s%d, s%d' % (sXO, sT[3], sT[4]))
    A('v_and_b32 %s, 31, %s' % (v(vA), v(vL)))
    A('v_lshlrev_b32 %s, 10, %s' % (v(vA), v(vA)))
    A('v_lshrrev_b32 %s, 5, %s' % (v(vB), v(vL)))
    A('v_lshl_add_u32 %s, %s, 3, %s' % (v(vXO), v(vB), v(vA)))
    for g in range(4):
        vm('buffer_load_dwordx2 %s, %s, %s, s%d offen offset:%d' % (v(XE + 2 * g, 2), v(vXO), s(rX, 4), sXO, 16 * g), 'xe')
    for i in range(8):
        A('v_cvt_pk_bf16_f32 %s, %s, %s' % (v(KB + i), v(AQ + 2 * i), v(AQ + 2 * i + 1)))
    mfma(v(PK, 16), v(WPH, 4), v(KB, 4), '0')
    mfma(v(PK, 16), v(WPH + 4, 4), v(KB + 4, 4), v(PK, 16))
    softmax_pm(PK, EE, TT, PH)
    stamp('phiq')
    A('v_lshlrev_b32 %s, 4, %s' % (v(vB), v(vB)))
    A('v_lshrrev_b32 %s, 2, %s' % (v(vA), v(vL)))
    A('v_lshlrev_b32 %s, 7, %s' % (v(vA), v(vA)))
    A('v_and_b32 %s, 3, %s' % (v(vC_), v(vL)))
    A('v_lshl_add_u32 %s, %s, 4, %s' % (v(vA), v(vC_), v(vA)))
    A('s_lshl_b32 s%d, s%d, 8' % (sT[3], sN0))
    def body():
        for ci, ch in enumerate((2, 4, 5)):
            A('s_add_u32 s%d, s%d, 0x%x' % (sT[4], sT[3], WS_MOD + ch * 4096))
            for g in range(4):
                A('buffer_load_dwordx4 %s, %s, %s, s%d offen offset:%d sc1' % (v(PG + 16 * ci + 4 * g, 4), v(vB), s(rWS, 4), sT[4], (g >> 1) * 128 + (g & 1) * 32))
        for i in range(4):
            A('s_mov_b32 s%d, 0x%x' % (sT[4], WS_MOD + (4 if i < 2 else 3) * 4096 + (i & 1) * 2048))
            A('buffer_load_dwordx4 %s, %s, %s, s%d offen sc1' % (v(TB + 4 * i, 4), v(vA), s(rWS, 4), sT[4]))
        VM.wait0()
        A('v_mov_b32 %s, 0' % v(vC_))
        for i in range(32):
            A('v_perm_b32 %s, %s, %s, s%d' % (v(vD), v(PG + 2 * i + 1), v(PG + 2 * i), sPerm))
            A('v_bitop3_b32 %s, %s, %s, s%d bitop3:0xf6' % (v(vC_), v(vC_), v(vD), sN))
        A('v_cmp_ne_u32 vcc, 0, %s' % v(vC_))
    poll(body, 'par')
    for i in range(48):
        A('v_and_b32 %s, s%d, %s' % (v(PG + i), sMaskHi, v(PG + i)))
    for i in range(8):
        A('v_perm_b32 %s, %s, %s, s%d' % (v(TB + i), v(TB + 2 * i + 1), v(TB + 2 * i), sPermHi))
    stamp('par')
    GT = 176
    def body():
        for rr in range(16):
            A('s_add_u32 s%d, s%d, 0x%x' % (sT[4], sKVb, rr * 4096))
            A('buffer_load_dwordx4 %s, %s, %s, s%d offen sc1' % (v(GT + 4 * rr, 4), v(vL16), s(rWS, 4), sT[4]))
        VM.wait0()
        A('v_xor_b32 %s, s%d, %s' % (v(vC_), sN, v(GT + 3)))
        for rr in range(1, 16):
            A('v_bitop3_b32 %s, %s, %s, s%d bitop3:0xf6' % (v(vC_), v(vC_), v(GT + 4 * rr + 3), sN))
        A('v_cmp_ne_u32 vcc, 0, %s' % v(vC_))
    poll(body, 'kv')
    stamp('kvseen')
    KT = 160
    A('v_mov_b32 %s, 0x3f80' % v(vA))
    A('v_mov_b32 %s, 0x3f800000' % v(vB))
    for rr in range(16):
        g = GT + 4 * rr
        for i in range(4):
            A('v_dot2_f32_bf16 %s, %s, %s, %s' % (v(KT + i), v(g + (i >> 1)), v(vA + (i & 1)), '0' if rr == 0 else v(KT + i)))
        if rr:
            A('v_add_f32 %s, %s, %s' % (v(GT + 2), v(GT + 2), v(g + 2)))
    A('v_lshl_add_u32 %s, %s, 3, s%d' % (v(vC_), v(vL), sSW))
    A('v_bfe_u32 %s, %s, 2, 1' % (v(vA), v(vL)))
    A('v_lshlrev_b32 %s, 4, %s' % (v(vA), v(vA)))
    A('v_bfe_u32 %s, %s, 3, 1' % (v(vB), v(vL)))
    A('v_lshl_add_u32 %s, %s, 3, %s' % (v(vA), v(vB), v(vA)))
    A('v_and_b32 %s, 3, %s' % (v(vB), v(vL)))
    A('v_lshl_add_u32 %s, %s, 1, %s' % (v(vA), v(vB), v(vA)))
    A('s_lshl_b32 s%d, s%d, 5' % (sT[3], sW))
    A('s_add_u32 s%d, s%d, 0x%x' % (sT[3], sT[3], S0 + 3 * 16384 + U15 + 512))
    A('v_add_u32 %s, s%d, %s' % (v(vA), sT[3], v(vA)))
    A('v_cvt_pk_bf16_f32 %s, %s, %s' % (v(KT), v(KT), v(KT + 1)))
    A('v_cvt_pk_bf16_f32 %s, %s, %s' % (v(KT + 1), v(KT + 2), v(KT + 3)))
    A('v_cvt_pk_bf16_f32 %s, %s, %s' % (v(KT + 2), v(GT + 2), v(GT + 2)))
    ds('ds_write_b64 %s, %s offset:%d' % (v(vC_), v(KT, 2), U15))
    ds('ds_write_b16 %s, %s' % (v(vA), v(KT + 2)))
    A('v_lshlrev_b32 %s, 3, %s' % (v(vC_), v(vL)))
    A('v_add_u32 %s, 0x%x, %s' % (v(vC_), S0 + U15, v(vC_)))
    A('v_lshrrev_b32 %s, 5, %s' % (v(vA), v(vL)))
    A('v_lshlrev_b32 %s, 4, %s' % (v(vA), v(vA)))
    A('v_add_u32 %s, 0x%x, %s' % (v(vA), S0 + 3 * 16384 + U15 + 512, v(vA)))
    A('v_bfe_u32 %s, %s, 4, 1' % (v(vB), v(vL)))
    A('v_cmp_eq_u32 vcc, 0, %s' % v(vB))
    barrier()
    KA = 176
    ZF = 200
    for wv in range(4):
        ds('ds_read_b64 %s, %s offset:%d' % (v(KA + 2 * wv, 2), v(vC_), wv * 16384), 'ka')
    for g in range(4):
        ds('ds_read_b128 %s, %s offset:%d' % (v(ZF + 4 * g, 4), v(vA), 32 * g), 'zf')
    LG.wait('ka')
    for i in range(8):
        A('v_cndmask_b32 %s, %s, 0, vcc' % (v(KA + 8 + i), v(KA + i)))
    for i in range(8):
        A('v_cndmask_b32 %s, 0, %s, vcc' % (v(KA + i), v(KA + i)))
    OA = 160
    for hd in range(2):
        for sg in range(2):
            mfma(v(OA, 16), v(KA + 8 * hd + 4 * sg, 4), v(PH + 8 * hd + 4 * sg, 4), '0' if hd == 0 and sg == 0 else v(OA, 16))
    LG.wait('zf')
    DN = 216
    for i in range(8):
        for hd in range(2):
            A('v_dot2_f32_bf16 %s, %s, %s, %s' % (v(DN + 2 * hd), v(PH + 8 * hd + i), v(ZF + 8 * hd + i), '0' if i == 0 else v(DN + 2 * hd)))
    def post(x):
        A('v_add_f32 %s, 0x358637bd, %s' % (v(x), v(x)))
        A('v_rcp_f32 %s, %s' % (v(x), v(x)))
    halfsum_pair(DN, DN + 2, 'v_add_f32', post)
    for hd in range(2):
        for i in range(4):
            r = OA + 8 * hd + 2 * i
            A('v_pk_mul_f32 %s, %s, %s op_sel_hi:[1,0]' % (v(r, 2), v(r, 2), v(DN + 2 * hd, 2)))
    OP = 220
    for i in range(8):
        A('v_cvt_pk_bf16_f32 %s, %s, %s' % (v(OP + i), v(OA + 2 * i), v(OA + 2 * i + 1)))
    A('s_lshl_b32 s%d, s%d, 4' % (sT[3], sW))
    A('s_add_u32 s%d, s%d, s%d' % (sT[3], sT[3], sC))
    A('s_lshl_b32 s%d, s%d, 11' % (sT[3], sT[3]))
    A('s_add_u32 s%d, s%d, 0x%x' % (sT[3], sT[3], G_O))
    publish([('buffer_store_dwordx4', v(OP, 4), vL16, sT[3], 0), ('buffer_store_dwordx4', v(OP + 4, 4), vL16, sT[3], 1024)], 1)
    stamp('opub')
    if o['stop'] == 'o':
        finish()
        return A
    stage_convert(2)
    vTP = 11
    A('v_lshrrev_b32 %s, 5, %s' % (v(vA), v(vL)))
    A('v_bfe_u32 %s, %s, 2, 2' % (v(vB), v(vL)))
    A('v_lshl_add_u32 %s, %s, 2, %s' % (v(vB), v(vA), v(vB)))
    A('v_lshl_add_u32 %s, %s, 6, %s' % (v(vTP), v(vB), v(vG8)))
    A('v_add_u32 %s, 0x%x, %s' % (v(vTP), WBASE, v(vTP)))
    A('s_cmp_eq_u32 s%d, 3' % sW)
    A('s_cbranch_scc1 L_nout')
    A('v_lshrrev_b32 %s, 2, %s' % (v(vB), v(vL)))
    A('v_lshlrev_b32 %s, 5, %s' % (v(vB), v(vB)))
    A('v_and_b32 %s, 1, %s' % (v(vC_), v(vL)))
    A('v_lshl_add_u32 %s, %s, 4, %s' % (v(vB), v(vC_), v(vB)))
    A('v_bfe_u32 %s, %s, 1, 1' % (v(vC_), v(vL)))
    A('v_lshl_add_u32 %s, %s, 3, %s' % (v(vB), v(vC_), v(vB)))
    A('v_add_u32 %s, s%d, %s' % (v(vB), sSW, v(vB)))
    for i in range(4):
        ds('ds_write_b64 %s, %s offset:%d' % (v(vB), v(TB + 2 * i, 2), 512 * i))
    A('v_bfe_u32 %s, %s, 2, 1' % (v(vB), v(vL)))
    A('v_lshlrev_b32 %s, 10, %s' % (v(vB), v(vB)))
    A('v_lshl_add_u32 %s, %s, 4, %s' % (v(vB), v(vA), v(vB)))
    A('v_add_u32 %s, s%d, %s' % (v(vB), sSW, v(vB)))
    A('s_lshl_b32 s%d, s%d, 15' % (sT[3], sW))
    A('v_add_u32 %s, s%d, %s' % (v(vC_), sT[3], v(vTP)))
    UA = 160
    UB = 176
    def uread(ks):
        b = UB + 8 * (ks % 4)
        ds('ds_read_b128 %s, %s offset:%d' % (v(b, 4), v(vB), ks * 32), 'u%d' % ks)
        for h2 in range(2):
            ds('ds_read_b64_tr_b16 %s, %s offset:%d' % (v(b + 4 + 2 * h2, 2), v(vC_), ks * 1024 + h2 * 512), 'u%d' % ks)
    for ks in range(3):
        uread(ks)
    for ks in range(32):
        b = UB + 8 * (ks % 4)
        LG.wait('u%d' % ks)
        mfma(v(UA, 16), v(b, 4), v(b + 4, 4), '0' if ks == 0 else v(UA, 16))
        if ks + 3 < 32:
            uread(ks + 3)
    A('v_cvt_pk_bf16_f32 %s, %s, %s' % (v(UB), v(UA), v(UA)))
    A('v_and_b32 %s, s%d, %s' % (v(UB + 1), sMaskHi, v(UB)))
    A('v_sub_f32 %s, %s, %s' % (v(UB + 1), v(UA), v(UB + 1)))
    A('v_cvt_pk_bf16_f32 %s, %s, 0' % (v(UB + 1), v(UB + 1)))
    A('v_lshl_add_u32 %s, %s, 3, s%d' % (v(vB), v(vL), sSW))
    ds('ds_write_b64 %s, %s offset:%d' % (v(vB), v(UB, 2), U15 + 512))
    LG.wait0()
    A.label('L_nout')
    stamp('ut')

    A('v_bfe_u32 %s, %s, 1, 2' % (v(vA), v(vL)))
    A('v_and_b32 %s, 1, %s' % (v(vB), v(vL)))
    A('v_lshl_add_u32 %s, %s, 2, %s' % (v(vA), v(vA), v(vB)))
    A('s_lshl_b32 s%d, s%d, 4' % (sT[3], sW))
    A('s_and_b32 s%d, s%d, 2' % (sT[4], sRow))
    A('s_add_u32 s%d, s%d, s%d' % (sT[3], sT[3], sT[4]))
    A('v_add_lshl_u32 %s, %s, s%d, 2' % (v(vA), v(vA), sT[3]))
    sB0, sB1 = sT[1], sT[2]
    A('s_lshl_b32 s%d, s%d, 2' % (sB0, sRow))
    A('s_add_u32 s%d, s%d, s%d' % (sB0, sB0, sW))
    A('s_lshl_b32 s%d, s%d, 13' % (sB0, sB0))
    A('s_xor_b32 s%d, s%d, 0x8000' % (sB1, sB0))
    flagpoll(vA, 1, 'o')
    stamp('oseen')
    OF = 96
    AC = 160
    for ks in range(8):
        fload(OF + 4 * ks, G_O, ks, 'o1_%d' % ks, sB1)
    for ks in range(8):
        fload(OF + 32 + 4 * ks, G_O, ks, 'o0_%d' % ks, sB0)
    for t in stage_issue(3):
        dma(*t)
    vPW = 12
    A('v_add_u32 %s, s%d, %s' % (v(vPW), sSW, v(vL16)))
    def pwrite(reg, tau, q):
        ds('ds_write_b128 %s, %s offset:%d' % (v(vPW), reg, ((tau - 1) * 4 + q) * 1024))
    for ks in range(8):
        VM.wait('o1_%d' % ks)
        for tau in (1, 3):
            mfma(v(AC + 16 * tau, 16), a(8 * ks + 4 * (tau >> 1), 4), v(OF + 4 * ks, 4), '0' if ks == 0 else v(AC + 16 * tau, 16))
    wl = [(1, q) for q in range(4)] + [(3, q) for q in range(4)]
    for ks in range(8):
        VM.wait('o0_%d' % ks)
        mfma(v(AC + 32, 16), a(8 * ks + 4, 4), v(OF + 32 + 4 * ks, 4), '0' if ks == 0 else v(AC + 32, 16))
        if ks >= 1:
            tau, q = wl.pop(0)
            pwrite(v(AC + 16 * tau + 4 * q, 4), tau, q)
    wl += [(2, q) for q in range(4)]
    for ks in range(8):
        mfma(v(AC, 16), a(8 * ks, 4), v(OF + 32 + 4 * ks, 4), '0' if ks == 0 else v(AC, 16))
        if wl and ks != 1:
            tau, q = wl.pop(0)
            pwrite(v(AC + 16 * tau + 4 * q, 4), tau, q)
    assert not wl
    for g in range(1, 4):
        A('v_xor_b32 %s, 0x%x, %s' % (v(vA + g - 1), g << 14, v(vPW)))
    XU = 96
    VM.wait('xe')
    for i in range(8):
        A('v_lshlrev_b32 %s, 16, %s' % (v(XU + 2 * i), v(XE + i)))
        A('v_and_b32 %s, s%d, %s' % (v(XU + 2 * i + 1), sMaskHi, v(XE + i)))
    barrier()
    def reduce_in(dst, tmp):
        for tau in range(1, 4):
            for q in range(4):
                ds('ds_read_b128 %s, %s offset:%d' % (v(tmp + 16 * (tau - 1) + 4 * q, 4), v(vA + tau - 1), ((tau - 1) * 4 + q) * 1024), 'r%d' % tau)
        for tau in range(1, 4):
            LG.wait('r%d' % tau)
            for i in range(8):
                A('v_pk_add_f32 %s, %s, %s' % (v(dst + 2 * i, 2), v(dst + 2 * i, 2), v(tmp + 16 * (tau - 1) + 2 * i, 2)))
    reduce_in(AC, AC + 16)
    X1P = 112
    for i in range(8):
        A('v_pk_fma_f32 %s, %s, %s, %s' % (v(AC + 2 * i, 2), v(AC + 2 * i, 2), v(PG + 2 * i, 2), v(XU + 2 * i, 2)))
    for i in range(8):
        A('v_cvt_pk_bf16_f32 %s, %s, %s' % (v(X1P + i), v(AC + 2 * i), v(AC + 2 * i + 1)))
    for i in range(8):
        A('v_lshlrev_b32 %s, 16, %s' % (v(AC + 2 * i), v(X1P + i)))
        A('v_and_b32 %s, s%d, %s' % (v(AC + 2 * i + 1), sMaskHi, v(X1P + i)))
    YP = 120
    for i in range(8):
        A('v_pk_mul_f32 %s, %s, %s' % (v(XU + 2 * i, 2), v(AC + 2 * i, 2), v(PG + 16 + 2 * i, 2)))
    for i in range(8):
        A('v_cvt_pk_bf16_f32 %s, %s, %s' % (v(YP + i), v(XU + 2 * i), v(XU + 2 * i + 1)))
    S1, S2 = 128, 130
    A('v_pk_add_f32 %s, %s, %s' % (v(S1, 2), v(AC, 2), v(AC + 2, 2)))
    A('v_pk_mul_f32 %s, %s, %s' % (v(S2, 2), v(AC, 2), v(AC, 2)))
    A('v_pk_fma_f32 %s, %s, %s, %s' % (v(S2, 2), v(AC + 2, 2), v(AC + 2, 2), v(S2, 2)))
    for i in range(2, 8):
        A('v_pk_add_f32 %s, %s, %s' % (v(S1, 2), v(S1, 2), v(AC + 2 * i, 2)))
        A('v_pk_fma_f32 %s, %s, %s, %s' % (v(S2, 2), v(AC + 2 * i, 2), v(AC + 2 * i, 2), v(S2, 2)))
    A('v_add_f32 %s, %s, %s' % (v(S1), v(S1), v(S1 + 1)))
    A('v_add_f32 %s, %s, %s' % (v(S2), v(S2), v(S2 + 1)))
    A('v_permlane32_swap_b32 %s, %s' % (v(S1), v(S2)))
    A('v_add_f32 %s, %s, %s' % (v(S1), v(S1), v(S2)))
    A('v_and_b32 %s, 31, %s' % (v(vA), v(vL)))
    A('v_lshlrev_b32 %s, 4, %s' % (v(vA), v(vA)))
    A('v_lshrrev_b32 %s, 5, %s' % (v(vB), v(vL)))
    A('v_lshl_add_u32 %s, %s, 2, %s' % (v(vA), v(vB), v(vA)))
    A('s_lshl_b32 s%d, s%d, 12' % (sT[3], sRow))
    A('s_lshr_b32 s%d, s%d, 1' % (sT[4], sN0))
    A('s_lshl_b32 s%d, s%d, 9' % (sT[4], sT[4]))
    A('s_add_u32 s%d, s%d, s%d' % (sT[3], sT[3], sT[4]))
    A('s_and_b32 s%d, s%d, 1' % (sT[4], sN0))
    A('s_lshl_b32 s%d, s%d, 3' % (sT[4], sT[4]))
    A('s_add_u32 s%d, s%d, s%d' % (sT[3], sT[3], sT[4]))
    A('s_add_u32 s%d, s%d, 0x%x' % (sT[3], sT[3], G_STAT))
    A('s_lshl_b32 s%d, s%d, 4' % (sT[4], sRow))
    A('s_add_u32 s%d, s%d, s%d' % (sT[4], sT[4], sN0))
    A('s_lshl_b32 s%d, s%d, 11' % (sT[4], sT[4]))
    A('s_add_u32 s%d, s%d, 0x%x' % (sT[4], sT[4], G_Y))
    publish([('buffer_store_dwordx4', v(YP, 4), vL16, sT[4], 0), ('buffer_store_dwordx4', v(YP + 4, 4), vL16, sT[4], 1024),
             ('buffer_store_dword', v(S1), vA, sT[3], 0)], 2)
    stamp('ypub')
    for i in range(16):
        A('v_accvgpr_write_b32 %s, %s' % (a(240 + i), v(AC + i)))
    GB = 240
    for i in range(16):
        A('v_mov_b32 %s, %s' % (v(GB + i), v(PG + 32 + i)))
    if o['stop'] == 'y':
        finish()
        return A
    stage_convert(3)
    UF = 228
    A('v_lshlrev_b32 %s, 3, %s' % (v(vA), v(vL)))
    A('v_add_u32 %s, 0x%x, %s' % (v(vA), S0 + U15 + 512, v(vA)))
    for t in range(3):
        ds('ds_read_b64 %s, %s offset:%d' % (v(UF + 4 * t, 2), v(vA), t * 16384))
        A('v_mov_b32 %s, 0' % v(UF + 4 * t + 2))
        A('v_mov_b32 %s, 0' % v(UF + 4 * t + 3))
    barrier()

    YF = 16
    A3 = 144
    W3 = 192
    vTP2 = 12
    A('v_add_u32 %s, 0x10000, %s' % (v(vTP2), v(vTP)))
    def w3read(ks):
        b = W3 + 12 * (ks % 3)
        for t in range(3):
            for h2 in range(2):
                ds('ds_read_b64_tr_b16 %s, %s offset:%d' % (v(b + 4 * t + 2 * h2, 2), v(vTP2 if t == 2 else vTP), (SEG[t] & 0xffff) + ks * 1024 + h2 * 512), 'w%d_%d' % (ks, t))
    w3read(0)
    w3read(1)
    A('v_and_b32 %s, 15, %s' % (v(vA), v(vL)))
    A('v_lshlrev_b32 %s, 1, %s' % (v(vA), v(vA)))
    A('s_lshr_b32 s%d, s%d, 1' % (sT[3], sW))
    A('s_lshl_b32 s%d, s%d, 5' % (sT[3], sT[3]))
    A('s_and_b32 s%d, s%d, 1' % (sT[4], sW))
    A('s_add_u32 s%d, s%d, s%d' % (sT[3], sT[3], sT[4]))
    A('v_add_lshl_u32 %s, %s, s%d, 2' % (v(vA), v(vA), sT[3]))
    A('v_and_b32 %s, 31, %s' % (v(vB), v(vL)))
    A('v_lshlrev_b32 %s, 4, %s' % (v(vB), v(vB)))
    A('v_lshrrev_b32 %s, 5, %s' % (v(vC_), v(vL)))
    A('v_lshl_add_u32 %s, %s, 11, %s' % (v(vB), v(vC_), v(vB)))
    A('s_lshl_b32 s%d, s%d, 12' % (sT[3], sW))
    A('s_add_u32 s%d, s%d, 0x%x' % (sT[3], sT[3], G_STAT))
    A('s_lshl_b32 s%d, s%d, 15' % (sT[0], sW))
    flagpoll(vA, 2, 'y')
    stamp('yseen')
    D = o['ydepth']
    for ks in range(D):
        fload(YF + 4 * ks, G_Y, ks, 'y%d' % ks)
    r4 = stage_issue(4)
    SS = YF
    BF = YF + 16
    def stat_code():
        c = []
        E_ = c.append
        E_('v_pk_add_f32 %s, %s, %s' % (v(SS, 2), v(SS, 2), v(SS + 2, 2)))
        for i in range(2, 8):
            E_('v_pk_add_f32 %s, %s, %s' % (v(SS, 2), v(SS, 2), v(SS + 2 * i, 2)))
        E_('v_mov_b32 %s, %s' % (v(SS + 2), v(SS)))
        E_('v_mov_b32 %s, %s' % (v(SS + 3), v(SS + 1)))
        E_('v_permlane32_swap_b32 %s, %s' % (v(SS), v(SS + 2)))
        E_('v_permlane32_swap_b32 %s, %s' % (v(SS + 1), v(SS + 3)))
        E_('v_pk_add_f32 %s, %s, %s' % (v(SS, 2), v(SS, 2), v(SS + 2, 2)))
        E_('v_mul_f32 %s, 0xbb000000, %s' % (v(SS), v(SS)))
        E_('v_mul_f32 %s, 0x3b000000, %s' % (v(SS + 1), v(SS + 1)))
        E_('v_fma_f32 %s, -%s, %s, %s' % (v(SS + 1), v(SS), v(SS), v(SS + 1)))
        E_('v_max_f32 %s, 0, %s' % (v(SS + 1), v(SS + 1)))
        E_('v_add_f32 %s, 0x3727c5ac, %s' % (v(SS + 1), v(SS + 1)))
        E_('v_rsq_f32 %s, %s' % (v(SS + 2), v(SS + 1)))
        E_('v_cmp_gt_u32 vcc, 32, %s' % v(vL))
        E_('v_mul_f32 %s, %s, %s' % (v(SS + 1), v(SS + 1), v(SS + 2)))
        E_('v_cndmask_b32 %s, %s, %s, vcc' % (v(SS), v(SS + 1), v(SS)))
        E_('v_cvt_pk_bf16_f32 %s, %s, 0' % (v(BF + 1), v(SS)))
        E_('v_lshlrev_b32 %s, 16, %s' % (v(SS + 1), v(BF + 1)))
        E_('v_sub_f32 %s, %s, %s' % (v(SS + 1), v(SS), v(SS + 1)))
        E_('v_cvt_pk_bf16_f32 %s, %s, %s' % (v(BF), v(SS), v(SS + 1)))
        E_('v_mov_b32 %s, 0' % v(BF + 2))
        E_('v_mov_b32 %s, 0' % v(BF + 3))
        E_('v_lshl_add_u32 %s, %s, 2, s%d' % (v(vA), v(vL), sSW))
        return c
    sc = None
    for ks in range(32):
        wb = W3 + 12 * (ks % 3)
        VM.wait('y%d' % ks)
        if ks == 24:
            VM.wait('st')
            sc = stat_code()
        for t in range(3):
            LG.wait('w%d_%d' % (ks, t))
            mfma(v(A3 + 16 * t, 16), v(wb + 4 * t, 4), v(YF + 4 * ks, 4), '0' if ks == 0 else v(A3 + 16 * t, 16))
            if t == 0 and ks + 2 < 32:
                w3read(ks + 2)
            if t == 1:
                if ks + D < 32:
                    fload(YF + 4 * (ks + D), G_Y, ks + D, 'y%d' % (ks + D))
                else:
                    for _ in range(2):
                        if r4:
                            dma(*r4.pop(0))
            if t == 2 and ks == 5:
                for p in range(4):
                    vm('buffer_load_dwordx4 %s, %s, %s, s%d offen offset:%d sc1' % (v(SS + 4 * p, 4), v(vB), s(rG, 4), sT[3], p * 512), 'st')
            if t == 2 and sc:
                for _ in range(5):
                    if sc:
                        A(sc.pop(0))
    assert not sc
    while r4:
        dma(*r4.pop(0))
    ds('ds_write_b32 %s, %s offset:%d' % (v(vA), v(SS + 2), U15))
    HP = 40
    for t in range(3):
        mfma(v(A3 + 16 * t, 16), v(UF + 4 * t, 4), v(BF, 4), v(A3 + 16 * t, 16))
    stamp('loop3')
    for t in range(3):
        for i in range(8):
            A('v_cvt_pk_bf16_f32 %s, %s, %s' % (v(HP + 8 * t + i), v(A3 + 16 * t + 2 * i), v(A3 + 16 * t + 2 * i + 1)))
        for i in range(8):
            A('v_pk_max_i16 %s, %s, 0' % (v(HP + 8 * t + i), v(HP + 8 * t + i)))
    A('s_mul_i32 s%d, s%d, 44' % (sT[3], sW))
    A('s_add_u32 s%d, s%d, s%d' % (sT[4], sT[3], sT0))
    A('s_lshl_b32 s%d, s%d, 11' % (sT[4], sT[4]))
    A('s_add_u32 s%d, s%d, 0x%x' % (sT[4], sT[4], G_HH))
    A('s_add_u32 s%d, s%d, 43' % (sT[3], sT[3]))
    A('s_lshl_b32 s%d, s%d, 11' % (sT[3], sT[3]))
    A('s_add_u32 s%d, s%d, 0x%x' % (sT[3], sT[3], G_HH))
    A('s_add_u32 s%d, s%d, 4096' % (sT[5], sT[4]))
    A('s_cmp_ge_u32 s%d, 11' % sC)
    A('s_cselect_b32 s%d, s%d, s%d' % (sT[3], sT[3], sT[5]))
    publish([('buffer_store_dwordx4', v(HP + 4 * i, 4), vL16, sT[4], 1024 * i) for i in range(4)] +
            [('buffer_store_dwordx4', v(HP + 16 + 4 * i, 4), vL16, sT[3], 1024 * i) for i in range(2)], 3)
    stamp('Hpub')
    if o['stop'] == 'H':
        finish()
        return A
    stage_convert(4)

    A('v_bfe_u32 %s, %s, 1, 4' % (v(vA), v(vL)))
    A('v_and_b32 %s, 1, %s' % (v(vB), v(vL)))
    A('v_lshl_add_u32 %s, %s, 2, %s' % (v(vA), v(vA), v(vB)))
    A('s_and_b32 s%d, s%d, 2' % (sT[4], sRow))
    A('v_add_lshl_u32 %s, %s, s%d, 2' % (v(vA), v(vA), sT[4]))
    A('s_mul_i32 s%d, s%d, 22' % (sT[3], sW))
    A('s_mul_i32 s%d, s%d, 88' % (sB0, sRow))
    A('s_add_u32 s%d, s%d, s%d' % (sB0, sB0, sT[3]))
    A('s_lshl_b32 s%d, s%d, 10' % (sB0, sB0))
    A('s_xor_b32 s%d, s%d, 1' % (sB1, sRow))
    A('s_mul_i32 s%d, s%d, 88' % (sB1, sB1))
    A('s_add_u32 s%d, s%d, s%d' % (sB1, sB1, sT[3]))
    A('s_lshl_b32 s%d, s%d, 10' % (sB1, sB1))
    srd(rOUT, pOUT, 2048 * 1024)
    flagpoll(vA, 3, 'H')
    stamp('Hseen')
    H1F, H0F = 16, 104
    seq = [(H1F + 4 * ks, ks, 'H1_%d' % ks, sB1) for ks in range(22)] + [(H0F + 4 * ks, ks, 'H0_%d' % ks, sB0) for ks in range(22)]
    def hload():
        if seq:
            d, ks, tag, sb = seq.pop(0)
            if ks % 4 == 0:
                A('s_add_u32 s%d, s%d, 0x%x' % (sT[5], sb, G_HH + ks * 1024))
            vm('buffer_load_dwordx4 %s, %s, %s, s%d offen offset:%d sc1' % (v(d, 4), v(vL16), s(rG, 4), sT[5], (ks % 4) * 1024), tag)
    for _ in range(12):
        hload()
    A('v_add_u32 %s, s%d, %s' % (v(vPW), sSW, v(vL16)))
    def skip3(emit):
        L = A.newlab('w3')
        A('s_cmp_eq_u32 s%d, 3' % sW)
        A('s_cbranch_scc1 %s' % L)
        emit()
        A.label(L)
    def p4a(ks):
        for tau in (1, 3):
            mfma(a(16 * tau, 16), a(64 + 8 * ks + 4 * (tau >> 1), 4), v(H1F + 4 * ks, 4), '0' if ks == 0 else a(16 * tau, 16))
    for ks in range(20):
        VM.wait('H1_%d' % ks)
        p4a(ks)
        hload()
    hload()
    hload()
    VM.wait('H1_21')
    skip3(lambda: (p4a(20), p4a(21)))
    wl = [(1, q) for q in range(4)] + [(3, q) for q in range(4)]
    def p4b(ks, tau):
        mfma(a(16 * tau, 16), a(64 + 8 * ks + 4 * (tau >> 1), 4), v(H0F + 4 * ks, 4), '0' if ks == 0 else a(16 * tau, 16))
    LAG = 6
    for ks in range(20):
        VM.wait('H0_%d' % ks)
        p4b(ks, 2)
        hload()
        if ks >= LAG:
            p4b(ks - LAG, 0)
        if ks >= 1 and wl:
            tau, q = wl.pop(0)
            pwrite(a(16 * tau + 4 * q, 4), tau, q)
    VM.wait('H0_21')
    skip3(lambda: (p4b(20, 2), p4b(21, 2), p4b(20, 0), p4b(21, 0)))
    wl = [(2, q) for q in range(4)]
    for ks in range(20 - LAG, 20):
        p4b(ks, 0)
        if ks >= 20 - LAG + 2 and wl:
            tau, q = wl.pop(0)
            pwrite(a(16 * tau + 4 * q, 4), tau, q)
    assert not wl
    for g in range(1, 4):
        A('v_xor_b32 %s, 0x%x, %s' % (v(vA + g - 1), g << 14, v(vPW)))
    A('v_and_b32 %s, 31, %s' % (v(vD), v(vL)))
    A('s_lshl_b32 s%d, s%d, 14' % (sT[3], sRow))
    A('s_add_u32 s%d, s%d, 0x%x' % (sT[3], sT[3], S0 + U15))
    A('v_lshl_add_u32 %s, %s, 2, s%d' % (v(vD), v(vD), sT[3]))
    FA, FX = 16, 96
    for i in range(16):
        A('v_accvgpr_read_b32 %s, %s' % (v(FX + i), a(240 + i)))
    stamp('loop4')
    barrier()
    ds('ds_read_b32 %s, %s' % (v(112), v(vD)), 'rs')
    for i in range(16):
        A('v_accvgpr_read_b32 %s, %s' % (v(FA + i), a(i)))
    reduce_in(FA, FA + 16)
    for i in range(8):
        A('v_pk_mul_f32 %s, %s, %s op_sel_hi:[1,0]' % (v(GB + 2 * i, 2), v(GB + 2 * i, 2), v(112, 2)))
    for i in range(8):
        A('v_pk_fma_f32 %s, %s, %s, %s' % (v(FA + 2 * i, 2), v(FA + 2 * i, 2), v(GB + 2 * i, 2), v(FX + 2 * i, 2)))
    for i in range(8):
        A('v_cvt_pk_bf16_f32 %s, %s, %s' % (v(FX + i), v(FA + 2 * i), v(FA + 2 * i + 1)))
    for g in range(4):
        vm('buffer_store_dwordx2 %s, %s, %s, s%d offen offset:%d' % (v(FX + 2 * g, 2), v(vXO), s(rOUT, 4), sXO, 16 * g))
    stamp('end')
    finish()
    return A


STAMPS = []

HEADER = """; Fused adaLN + hedgehog linear attention + relu FFN, one persistent launch (generated by dev/gen.py)
; @launch grid=(256,1,1) block=(256,1,1) lds=163840
.amdgcn_target "amdgcn-amd-amdhsa--gfx950"
.text
.globl {n}_kernel
.p2align 8
.type {n}_kernel,@function
{n}_kernel:
"""
FOOTER = """.section .rodata,"a"
.p2align 6
.amdhsa_kernel {n}_kernel
  .amdhsa_next_free_vgpr 512
  .amdhsa_next_free_sgpr 102
  .amdhsa_accum_offset 256
  .amdhsa_group_segment_fixed_size 0
  .amdhsa_kernarg_size 96
  .amdhsa_user_sgpr_count 2
  .amdhsa_user_sgpr_kernarg_segment_ptr 1
  .amdhsa_system_sgpr_workgroup_id_x 1
.end_amdhsa_kernel
"""


def build(debug=False, opts=None):
    del STAMPS[:]
    A = gen(debug, opts)
    return HEADER.format(n=NAME) + A.text() + FOOTER.format(n=NAME), list(STAMPS), A


if __name__ == '__main__':
    import json
    out = sys.argv[1]
    debug = 'debug' in sys.argv[2:]
    opts = {}
    for x in sys.argv[2:]:
        if '=' in x:
            k, val = x.split('=')
            opts[k] = int(val) if val.lstrip('-').isdigit() else val
    txt, st, A = build(debug, opts)
    open(out, 'w').write(txt)
    if debug:
        json.dump(st, open(out + '.stamps', 'w'))
    print('lines', len(A.lines), 'nops', A.nops, 'stamps', st)
```

```python
import sys
from asmb import Asm, v, a, s

NAME = 'adaLN_cond__linear_kernel_hedgehog__dense_activation_relu__prompt'

WS_HELLO = 0x1000
WS_MOD = 0x10000
WS_KV = 0x20000
WS_TS = 0x180000
WS_G0 = 0x200000
WS_GSTRIDE = 0x100000
G_H1, G_O, G_Y, G_STAT, G_HH, G_FLAG = 0x0, 0x20000, 0x40000, 0x60000, 0x80000, 0xE0000
SEG = [0, 32768, 65536]
S0 = 0
WBASE = 65536
U15 = 15 * 1024

LOG2E = 0x3fb8aa3b


class Cnt:
    def __init__(self, A, name, mx):
        self.A, self.name, self.mx = A, name, mx
        self.q = []

    def issue(self, tag=None):
        self.q.append(tag)

    def wait(self, tag):
        idx = [i for i, t in enumerate(self.q) if t == tag]
        if not idx:
            return
        n = len(self.q) - 1 - idx[-1]
        n = min(n, self.mx)
        self.A('s_waitcnt %s(%d)' % (self.name, n))
        self.q = self.q[len(self.q) - n:] if n else []

    def wait0(self):
        self.A('s_waitcnt %s(0)' % self.name)
        self.q = []

    def clear(self):
        self.q = []


def gen(debug=False, opts=None):
    o = dict(hdepth=8, ydepth=8, stop=None)
    o.update(opts or {})
    A = Asm()
    VM = Cnt(A, 'vmcnt', 63)
    LG = Cnt(A, 'lgkmcnt', 15)

    pX, pWQKV, pWPHI, pWO, pW1, pW2, pC, pWMOD, pOUT, pWS = 4, 6, 8, 10, 14, 16, 18, 20, 22, 26
    rX, rWQKV, rWO, rW1, rW2, rWMOD, rWS, rG, rOUT = 28, 32, 36, 40, 44, 48, 52, 56, 48
    sX, sJ, sR, sC, sW, sN, sPure, sCnt, sSW, sL2E, sPerm, sMaskHi = 60, 61, 62, 63, 64, 65, 66, 67, 68, 69, 70, 71
    sT = [72, 73, 74, 75, 76, 77, 78, 79]
    sT2 = 80
    sPermHi = 82
    sXcc = 83
    TS0 = 84
    ts_idx = [0]

    def vm(text, tag=None):
        A(text)
        VM.issue(tag)

    def ds(text, tag=None):
        A(text)
        LG.issue(tag)

    vL, vL16, vTS0, vTS1, vDS, vTSV = 0, 1, 2, 3, 4, 5
    vA, vB, vC_, vD = 6, 7, 8, 9
    def stamp(name):
        if not debug:
            return
        i = ts_idx[0]
        ts_idx[0] += 1
        STAMPS.append(name)
        A('s_memtime s[%d:%d]' % (TS0, TS0 + 1))
        A('s_waitcnt lgkmcnt(0)')
        LG.clear()
        A('v_writelane_b32 %s, s%d, %d' % (v(vTSV), TS0, i))

    def srd(r, p, nbytes):
        A('s_mov_b32 s%d, s%d' % (r, p))
        A('s_mov_b32 s%d, s%d' % (r + 1, p + 1))
        A('s_mov_b32 s%d, 0x%x' % (r + 2, nbytes))
        A('s_mov_b32 s%d, 0x00020000' % (r + 3))

    def dma(r, voff, sbase, goff, lbase, loff, tag):
        A('s_add_u32 m0, s%d, 0x%x' % (lbase, loff))
        A('s_add_u32 s%d, s%d, 0x%x' % (sT[7], sbase, goff))
        vm('buffer_load_dwordx4 %s, %s, s%d offen lds' % (v(voff), s(r, 4), sT[7]), tag)

    def poll(body, name):
        L, D = A.newlab('poll_' + name), A.newlab('done_' + name)
        A.label(L)
        A('s_nop 4')
        body()
        A('s_cbranch_vccz %s' % D)
        A('s_sub_u32 s%d, s%d, 1' % (sCnt, sCnt))
        A('s_cbranch_scc0 %s' % L)
        A('s_endpgm')
        A.label(D)

    def dual(emit):
        L1, L2 = A.newlab('imp'), A.newlab('join')
        A('s_cmp_eq_u32 s%d, 0' % sPure)
        A('s_cbranch_scc1 %s' % L1)
        q0 = list(VM.q)
        emit('')
        A('s_branch %s' % L2)
        A.label(L1)
        VM.q = q0
        emit(' sc1')
        A.label(L2)

    def publish(stores, phase):
        def emit(sc):
            for op, d, vo, so, imm in stores:
                vm('%s %s, %s, %s, s%d offen offset:%d%s' % (op, d, v(vo), s(rG, 4), so, imm, sc))
            A('s_mov_b64 exec, 1')
            VM.wait0()
            vm('buffer_store_dword %s, off, %s, s%d offset:%d%s' % (v(vD), s(rG, 4), sT[6], phase * 256, sc))
            A('s_mov_b64 exec, -1')
        A('s_lshl_b32 s%d, s%d, 2' % (sT[6], sC))
        A('s_add_u32 s%d, s%d, s%d' % (sT[6], sT[6], sW))
        A('s_lshl_b32 s%d, s%d, 2' % (sT[6], sT[6]))
        A('s_add_u32 s%d, s%d, 0x%x' % (sT[6], sT[6], G_FLAG))
        A('v_mov_b32 %s, s%d' % (v(vD), sN))
        dual(emit)

    def flagpoll(vaddr, phase, name):
        A('s_mov_b32 s%d, 0x%x' % (sT[6], G_FLAG + phase * 256))
        def body():
            A('buffer_load_dword %s, %s, %s, s%d offen sc1' % (v(vD), v(vaddr), s(rG, 4), sT[6]))
            VM.wait0()
            A('v_cmp_ne_u32 vcc, s%d, %s' % (sN, v(vD)))
        poll(body, name)

    def mfma(d, x, y, c):
        A('v_mfma_f32_32x32x16_bf16 %s, %s, %s, %s' % (d, x, y, c))

    def barrier():
        LG.wait0()
        A('s_barrier')

    units = [('wo', u) for u in range(16)] + [('w2', u) for u in range(44)]
    rounds = [(0, 15, 0), (15, 27, 0), (27, 42, 0), (42, 45, 12), (45, 60, 0)]
    sWOb, sW2b = 12, 13

    def stage_issue(rn):
        f, l, s0 = rounds[rn]
        out = []
        for i in range(f, l):
            m, u = units[i]
            out.append((rWO if m == 'wo' else rW2, vDS, sWOb if m == 'wo' else sW2b, u * 8192, sSW, (s0 + i - f) * 1024, 'R%d' % rn))
        return out

    def stage_convert(rn):
        f, l, s0 = rounds[rn]
        VM.wait('R%d' % rn)
        for i in range(f, l):
            m, u = units[i]
            base = (0 if m == 'wo' else 64) + (u >> 1) * 8 + 2 * (u & 1)
            for tn in range(2):
                ds('ds_read_b64_tr_b16 %s, %s offset:%d' % (a(base + 4 * tn, 2), v(vTS0 + tn), (s0 + i - f) * 1024))
        LG.wait0()

    def halfsum_pair(x, y, op, post=None):
        A('v_permlane32_swap_b32 %s, %s' % (v(x), v(y)))
        A('%s %s, %s, %s' % (op, v(x), v(x), v(y)))
        if post:
            post(x)
        A('v_mov_b32 %s, %s' % (v(y), v(x)))
        A('v_permlane32_swap_b32 %s, %s' % (v(x), v(y)))

    def softmax_pm(P, E, T, OUT):
        mx0, mx1, mn0, mn1 = T, T + 1, T + 2, T + 3
        for hd, (mx, mn) in enumerate(((mx0, mn0), (mx1, mn1))):
            p = P + 8 * hd
            for r, op3, op2 in ((mx, 'v_max3_f32', 'v_max_f32'), (mn, 'v_min3_f32', 'v_min_f32')):
                A('%s %s, %s, %s, %s' % (op3, v(r), v(p), v(p + 1), v(p + 2)))
                A('%s %s, %s, %s, %s' % (op3, v(r), v(r), v(p + 3), v(p + 4)))
                A('%s %s, %s, %s, %s' % (op3, v(r), v(r), v(p + 5), v(p + 6)))
                A('%s %s, %s, %s' % (op2, v(r), v(r), v(p + 7)))
        sc = lambda x: A('v_mul_f32 %s, s%d, %s' % (v(x), sL2E, v(x)))
        halfsum_pair(mx0, mx1, 'v_max_f32', sc)
        halfsum_pair(mn0, mn1, 'v_min_f32', sc)
        for hd, (mx, mn) in enumerate(((mx0, mn0), (mx1, mn1))):
            for i in range(8):
                A('v_fma_f32 %s, %s, s%d, -%s' % (v(E + 16 * hd + i), v(P + 8 * hd + i), sL2E, v(mx)))
                A('v_fma_f32 %s, -%s, s%d, %s' % (v(E + 16 * hd + 8 + i), v(P + 8 * hd + i), sL2E, v(mn)))
        for i in range(32):
            A('v_exp_f32 %s, %s' % (v(E + i), v(E + i)))
        for g in range(4):
            e = E + 8 * g
            t = P + 4 * g
            A('v_pk_add_f32 %s, %s, %s' % (v(t, 2), v(e, 2), v(e + 2, 2)))
            A('v_pk_add_f32 %s, %s, %s' % (v(t + 2, 2), v(e + 4, 2), v(e + 6, 2)))
        for g in range(4):
            t = P + 4 * g
            A('v_pk_add_f32 %s, %s, %s' % (v(t, 2), v(t, 2), v(t + 2, 2)))
        for g in range(4):
            t = P + 4 * g
            A('v_add_f32 %s, %s, %s' % (v(t), v(t), v(t + 1)))
        rc = lambda x: A('v_rcp_f32 %s, %s' % (v(x), v(x)))
        halfsum_pair(P, P + 4, 'v_add_f32', rc)
        halfsum_pair(P + 8, P + 12, 'v_add_f32', rc)
        for g in range(4):
            e = E + 8 * g
            t = P + 4 * g
            for i in range(4):
                A('v_pk_mul_f32 %s, %s, %s op_sel_hi:[1,0]' % (v(e + 2 * i, 2), v(e + 2 * i, 2), v(t, 2)))
        for g in range(4):
            e = E + 8 * g
            for i in range(4):
                A('v_cvt_pk_bf16_f32 %s, %s, %s' % (v(OUT + 4 * g + i), v(e + 2 * i), v(e + 2 * i + 1)))

    def finish():
        if debug:
            A('s_memrealtime s[%d:%d]' % (TS0, TS0 + 1))
            A('s_waitcnt lgkmcnt(0)')
            A('v_writelane_b32 %s, s%d, 62' % (v(vTSV), TS0))
            A('v_writelane_b32 %s, s%d, 61' % (v(vTSV), sPure))
            A('s_lshl_b32 s%d, s2, 2' % sT[0])
            A('s_add_u32 s%d, s%d, s%d' % (sT[0], sT[0], sW))
            A('s_lshl_b32 s%d, s%d, 8' % (sT[0], sT[0]))
            A('s_add_u32 s%d, s%d, 0x%x' % (sT[0], sT[0], WS_TS))
            A('v_lshlrev_b32 %s, 2, %s' % (v(vA), v(vL)))
            A('buffer_store_dword %s, %s, %s, s%d offen' % (v(vTSV), v(vA), s(rWS, 4), sT[0]))
        L = A.newlab('end')
        A('s_or_b32 s%d, s2, s%d' % (sT[0], sW))
        A('s_cmp_lg_u32 s%d, 0' % sT[0])
        A('s_cbranch_scc1 %s' % L)
        A('v_mov_b32 %s, s%d' % (v(vA), sN))
        A('buffer_store_dword %s, off, %s, 0 sc1' % (v(vA), s(rWS, 4)))
        A.label(L)
        A('s_endpgm')

    A('s_load_dwordx16 s[4:19], s[0:1], 0')
    A('s_load_dwordx8 s[20:27], s[0:1], 64')
    A('s_cmp_ge_u32 s2, 256')
    A('s_cbranch_scc0 L_go')
    A('s_endpgm')
    A.label('L_go')
    if debug:
        A('s_memrealtime s[%d:%d]' % (TS0 + 2, TS0 + 3))
        A('s_memtime s[%d:%d]' % (TS0, TS0 + 1))
    A('v_lshrrev_b32 %s, 6, v0' % v(vA))
    A('v_and_b32 %s, 63, v0' % v(vL))
    A('s_and_b32 s%d, s2, 7' % sX)
    A('v_readfirstlane_b32 s%d, %s' % (sW, v(vA)))
    A('s_lshr_b32 s%d, s2, 3' % sJ)
    A('s_lshr_b32 s%d, s%d, 4' % (sR, sJ))
    A('s_lshl_b32 s%d, s%d, 1' % (sT[0], sX))
    A('s_add_u32 s%d, s%d, s%d' % (sR, sR, sT[0]))
    A('s_and_b32 s%d, s%d, 15' % (sC, sJ))
    A('v_lshlrev_b32 %s, 4, %s' % (v(vL16), v(vL)))
    A('s_mov_b32 s%d, 0x%x' % (sL2E, LOG2E))
    A('s_mov_b32 s%d, 0x05040100' % sPerm)
    A('s_mov_b32 s%d, 0x07060302' % sPermHi)
    A('s_mov_b32 s%d, 0xffff0000' % sMaskHi)
    A('s_mov_b32 s%d, 0x20000' % sCnt)
    A('s_lshl_b32 s%d, s%d, 14' % (sSW, sW))
    A('s_getreg_b32 s%d, hwreg(HW_REG_XCC_ID, 0, 4)' % sXcc)
    WM = 16
    CC = 32
    XR = 36
    WPH = 248
    IDN = 240
    A('v_lshrrev_b32 %s, 1, %s' % (v(vA), v(vL)))
    A('v_lshlrev_b32 %s, 2, %s' % (v(vA), v(vA)))
    A('s_lshl_b32 s%d, s%d, 7' % (sT[0], sW))
    A('v_add_u32 %s, s%d, %s' % (v(vA), sT[0], v(vA)))
    A('v_lshlrev_b32 %s, 1, %s' % (v(vB), v(vA)))
    A('v_mul_u32_u24 %s, 0x1800, %s' % (v(vA), v(vA)))
    A('v_and_b32 %s, 1, %s' % (v(vC_), v(vL)))
    A('v_lshl_add_u32 %s, %s, 4, %s' % (v(vA), v(vC_), v(vA)))
    sCG = sT[1]
    A('s_lshr_b32 s%d, s%d, 2' % (sCG, sJ))
    A('s_lshl_b32 s%d, s%d, 3' % (sCG, sCG))
    A('s_add_u32 s%d, s%d, s%d' % (sCG, sCG, sX))
    A('s_lshl_b32 s%d, s%d, 2' % (sCG, sCG))
    A('s_and_b32 s%d, s%d, 3' % (sT[0], sJ))
    A('s_add_u32 s%d, s%d, s%d' % (sCG, sCG, sT[0]))
    A('s_lshl_b32 s%d, s%d, 5' % (sT[2], sCG))
    A('s_add_u32 s%d, s%d, 6144' % (sT[3], sT[2]))
    A('s_add_u32 s%d, s%d, %d' % (sT[4], sT[2], 2 * 6144))
    A('s_add_u32 s%d, s%d, %d' % (sT[5], sT[2], 3 * 6144))
    A('s_waitcnt lgkmcnt(0)')
    if debug:
        A('v_writelane_b32 %s, s%d, 0' % (v(vTSV), TS0))
        A('v_writelane_b32 %s, s%d, 63' % (v(vTSV), TS0 + 2))
        ts_idx[0] = 1
        STAMPS.append('start')
    stamp('karg')
    A('s_load_dword s%d, s[%d:%d], 0' % (sN, pWS, pWS + 1))
    srd(rWMOD, pWMOD, 512 * 6144)
    A('s_cmp_ge_u32 s%d, 24' % sJ)
    A('s_cbranch_scc1 L_nomodld')
    vm('global_load_dwordx2 %s, %s, s[%d:%d]' % (v(CC, 2), v(vB), pC, pC + 1), 'c')
    for i in range(4):
        vm('buffer_load_dwordx4 %s, %s, %s, s%d offen' % (v(WM + 4 * i, 4), v(vA), s(rWMOD, 4), sT[2 + i]), 'wm%d' % i)
    A.label('L_nomodld')
    srd(rX, pX, 2048 * 1024)
    A('v_and_b32 %s, 7, %s' % (v(vA), v(vL)))
    A('v_lshlrev_b32 %s, 10, %s' % (v(vA), v(vA)))
    A('v_lshrrev_b32 %s, 3, %s' % (v(vB), v(vL)))
    A('v_lshl_add_u32 %s, %s, 4, %s' % (v(vA), v(vB), v(vA)))
    A('s_lshl_b32 s%d, s%d, 4' % (sT[0], sR))
    A('s_add_u32 s%d, s%d, s%d' % (sT[0], sT[0], sC))
    A('s_lshl_b32 s%d, s%d, 13' % (sT[0], sT[0]))
    A('s_lshl_b32 s%d, s%d, 8' % (sT[2], sW))
    A('s_add_u32 s%d, s%d, s%d' % (sT[0], sT[0], sT[2]))
    for i in range(2):
        vm('buffer_load_dwordx4 %s, %s, %s, s%d offen offset:%d' % (v(XR + 4 * i, 4), v(vA), s(rX, 4), sT[0], 128 * i), 'x')
    srd(rWQKV, pWQKV, 512 * 3072)
    A('v_lshrrev_b32 %s, 2, %s' % (v(vA), v(vL)))
    A('v_mul_u32_u24 %s, 0xc00, %s' % (v(vA), v(vA)))
    A('v_and_b32 %s, 3, %s' % (v(vB), v(vL)))
    A('v_lshl_add_u32 %s, %s, 4, %s' % (v(vA), v(vB), v(vA)))
    A('s_mul_i32 s%d, s%d, %d' % (sT[0], sW, 128 * 3072))
    A('s_lshl_b32 s%d, s%d, 6' % (sT[2], sC))
    A('s_add_u32 s%d, s%d, s%d' % (sT[0], sT[0], sT[2]))
    A('s_lshl_b32 s%d, s%d, 13' % (sT[2], sW))
    for seg, gcol in ((0, 1024), (1, 2048), (2, 0)):
        for p in range(8):
            dma(rWQKV, vA, sT[0], p * 16 * 3072 + gcol, sT[2], WBASE + SEG[seg] + p * 1024, 'W')
    A('v_and_b32 %s, 15, %s' % (v(vA), v(vL)))
    A('v_lshlrev_b32 %s, 1, %s' % (v(vA), v(vA)))
    A('v_bfe_u32 %s, %s, 4, 1' % (v(vB), v(vL)))
    A('v_lshl_add_u32 %s, %s, 9, %s' % (v(vA), v(vB), v(vA)))
    A('v_lshrrev_b32 %s, 5, %s' % (v(vB), v(vL)))
    A('v_lshl_add_u32 %s, %s, 7, %s' % (v(vA), v(vB), v(vA)))
    A('s_lshl_b32 s%d, s%d, 10' % (sT[0], sC))
    A('v_add_u32 %s, s%d, %s' % (v(vA), sT[0], v(vA)))
    for i in range(8):
        d = i if i < 4 else i + 4
        vm('global_load_ushort %s, %s, s[%d:%d] offset:%d' % (v(WPH + i), v(vA), pWPHI, pWPHI + 1, d * 32), 'wphi')
    srd(rWO, pWO, 512 * 1024)
    srd(rW2, pW2, 1376 * 1024)
    srd(rW1, pW1, 512 * 2752)
    A('v_lshrrev_b32 %s, 3, %s' % (v(vDS), v(vL)))
    A('v_lshlrev_b32 %s, 10, %s' % (v(vDS), v(vDS)))
    A('v_bfe_u32 %s, %s, 4, 1' % (v(vA), v(vL)))
    A('v_lshlrev_b32 %s, 2, %s' % (v(vA), v(vA)))
    A('v_and_b32 %s, 7, %s' % (v(vB), v(vL)))
    A('v_xor_b32 %s, %s, %s' % (v(vA), v(vA), v(vB)))
    A('v_lshl_add_u32 %s, %s, 4, %s' % (v(vDS), v(vA), v(vDS)))
    A('s_and_b32 s%d, s%d, 7' % (sT[0], sC))
    A('s_lshl_b32 s%d, s%d, 7' % (sT[0], sT[0]))
    A('s_lshl_b32 s%d, s%d, 17' % (sWOb, sW))
    A('s_add_u32 s%d, s%d, s%d' % (sWOb, sWOb, sT[0]))
    A('s_mul_i32 s%d, s%d, %d' % (sW2b, sW, 352 * 1024))
    A('s_add_u32 s%d, s%d, s%d' % (sW2b, sW2b, sT[0]))
    for t in stage_issue(0):
        dma(*t)
    srd(rWS, pWS, WS_G0)
    A('s_lshl_b32 s%d, s%d, 20' % (sT[0], sR))
    A('s_add_u32 s%d, s%d, 0x%x' % (sT[0], sT[0], WS_G0))
    A('s_add_u32 s%d, s%d, s%d' % (rG, pWS, sT[0]))
    A('s_addc_u32 s%d, s%d, 0' % (rG + 1, pWS + 1))
    A('s_mov_b32 s%d, 0x%x' % (rG + 2, WS_GSTRIDE))
    A('s_mov_b32 s%d, 0x00020000' % (rG + 3))
    if debug:
        A('s_memtime s[%d:%d]' % (TS0 + 2, TS0 + 3))
    A('s_waitcnt lgkmcnt(0)')
    if debug:
        A('v_writelane_b32 %s, s%d, %d' % (v(vTSV), TS0 + 2, ts_idx[0]))
        ts_idx[0] += 1
        STAMPS.append('issued')
    stamp('nonce')
    A('s_add_u32 s%d, s%d, 1' % (sN, sN))
    A('s_cmp_lg_u32 s%d, 0' % sW)
    A('s_cbranch_scc1 L_nohello')
    A('v_mov_b32 %s, s%d' % (v(vA), sN))
    A('v_mov_b32 %s, s%d' % (v(vB), sXcc))
    A('s_lshl_b32 s%d, s2, 7' % sT[0])
    A('s_add_u32 s%d, s%d, 0x%x' % (sT[0], sT[0], WS_HELLO))
    A('s_mov_b64 exec, 1')
    A('buffer_store_dwordx2 %s, off, %s, s%d sc1' % (v(vA, 2), s(rWS, 4), sT[0]))
    A('s_mov_b64 exec, -1')
    A.label('L_nohello')
    A('v_lshrrev_b32 %s, 5, %s' % (v(vA), v(vL)))
    A('v_bfe_u32 %s, %s, 2, 2' % (v(vB), v(vL)))
    A('v_lshl_add_u32 %s, %s, 2, %s' % (v(vA), v(vA), v(vB)))
    A('v_lshlrev_b32 %s, 7, %s' % (v(vTS0), v(vA)))
    A('v_bfe_u32 %s, %s, 3, 1' % (v(vA), v(vL)))
    A('s_lshr_b32 s%d, s%d, 1' % (sT[0], sW))
    A('v_xor_b32 %s, s%d, %s' % (v(vA), sT[0], v(vA)))
    A('v_lshl_add_u32 %s, %s, 6, %s' % (v(vTS0), v(vA), v(vTS0)))
    A('v_bfe_u32 %s, %s, 4, 1' % (v(vA), v(vL)))
    A('v_lshlrev_b32 %s, 5, %s' % (v(vA), v(vA)))
    A('v_and_b32 %s, 3, %s' % (v(vB), v(vL)))
    vG8 = 10
    A('v_lshl_add_u32 %s, %s, 3, %s' % (v(vG8), v(vB), v(vA)))
    A('v_add3_u32 %s, %s, %s, s%d' % (v(vTS0), v(vTS0), v(vG8), sSW))
    A('v_xor_b32 %s, 64, %s' % (v(vTS1), v(vTS0)))
    A('v_and_b32 %s, 31, %s' % (v(vA), v(vL)))
    A('s_lshl_b32 s%d, s%d, 3' % (sT[0], sW))
    A('v_xor_b32 %s, s%d, %s' % (v(vA), sT[0], v(vA)))
    A('v_lshrrev_b32 %s, 5, %s' % (v(vB), v(vL)))
    A('v_lshlrev_b32 %s, 2, %s' % (v(vB), v(vB)))
    A('v_sub_u32 %s, %s, %s' % (v(vA), v(vA), v(vB)))
    A('v_mov_b32 %s, 0x3f80' % v(vB))
    A('v_mov_b32 %s, 0x3f800000' % v(vC_))
    for sg in range(2):
        for jj in range(4):
            i0 = 2 * jj
            f0 = 16 * sg + (i0 if i0 < 4 else i0 + 4)
            r = IDN + 4 * sg + jj
            A('v_cmp_eq_u32 vcc, %d, %s' % (f0, v(vA)))
            A('v_cndmask_b32 %s, 0, %s, vcc' % (v(r), v(vB)))
            A('v_cmp_eq_u32 vcc, %d, %s' % (f0 + 1, v(vA)))
            A('v_cndmask_b32 %s, %s, %s, vcc' % (v(r), v(r), v(vC_)))

    stamp('idn')
    ACC = 48
    SL = 56
    A('s_cmp_ge_u32 s%d, 24' % sJ)
    A('s_cbranch_scc1 L_nomod')
    q_save = list(VM.q)
    VM.wait('c')
    for i in range(4):
        src = CC + (i >> 1)
        if i & 1:
            A('v_and_b32 %s, s%d, %s' % (v(ACC + i), sMaskHi, v(src)))
        else:
            A('v_lshlrev_b32 %s, 16, %s' % (v(ACC + i), v(src)))
    for i in range(4):
        A('v_mul_f32 %s, 0x%x, %s' % (v(ACC + 4 + i), LOG2E ^ 0x80000000, v(ACC + i)))
    for i in range(4):
        A('v_exp_f32 %s, %s' % (v(ACC + 4 + i), v(ACC + 4 + i)))
    for i in range(4):
        A('v_add_f32 %s, 1.0, %s' % (v(ACC + 4 + i), v(ACC + 4 + i)))
    for i in range(4):
        A('v_rcp_f32 %s, %s' % (v(ACC + 4 + i), v(ACC + 4 + i)))
    for i in range(4):
        A('v_mul_f32 %s, %s, %s' % (v(ACC + i), v(ACC + i), v(ACC + 4 + i)))
    for i in range(4):
        A('v_cvt_pk_bf16_f32 %s, %s, 0' % (v(SL + i), v(ACC + i)))
        A('v_cvt_pk_bf16_f32 %s, 0, %s' % (v(SL + 4 + i), v(ACC + i)))
    for i in range(4):
        VM.wait('wm%d' % i)
        for jj in range(4):
            for hi in range(2):
                d = ACC + 2 * jj + hi
                A('v_dot2_f32_bf16 %s, %s, %s, %s' % (v(d), v(WM + 4 * i + jj), v(SL + 4 * hi + i), '0' if i == 0 else v(d)))
    for rr in (2, 4, 8):
        for d in range(8):
            A('v_add_f32_dpp %s, %s, %s row_ror:%d row_mask:0xf bank_mask:0xf' % (v(ACC + d), v(ACC + d), v(ACC + d), rr))
    A('v_lshrrev_b32 %s, 4, %s' % (v(vA), v(vL)))
    A('v_lshlrev_b32 %s, 6, %s' % (v(vA), v(vA)))
    A('v_and_b32 %s, 1, %s' % (v(vB), v(vL)))
    A('v_lshl_add_u32 %s, %s, 5, %s' % (v(vA), v(vB), v(vA)))
    A('v_add_u32 %s, s%d, %s' % (v(vA), sSW, v(vA)))
    A('s_mov_b32 exec_lo, 0x00030003')
    A('s_mov_b32 exec_hi, 0x00030003')
    ds('ds_write_b128 %s, %s offset:%d' % (v(vA), v(ACC, 4), U15))
    ds('ds_write_b128 %s, %s offset:%d' % (v(vA), v(ACC + 4, 4), U15 + 16))
    A('s_mov_b64 exec, -1')
    A.label('L_nomod')
    VM.q = q_save
    stamp('modp')
    XF = 64
    VM.wait('x')
    stamp('x')
    for i in range(8):
        A('v_lshlrev_b32 %s, 16, %s' % (v(XF + 2 * i), v(XR + i)))
        A('v_and_b32 %s, s%d, %s' % (v(XF + 2 * i + 1), sMaskHi, v(XR + i)))
    S1, S2 = 80, 82
    A('v_pk_add_f32 %s, %s, %s' % (v(S1, 2), v(XF, 2), v(XF + 2, 2)))
    A('v_pk_mul_f32 %s, %s, %s' % (v(S2, 2), v(XF, 2), v(XF, 2)))
    A('v_pk_fma_f32 %s, %s, %s, %s' % (v(S2, 2), v(XF + 2, 2), v(XF + 2, 2), v(S2, 2)))
    for i in range(2, 8):
        A('v_pk_add_f32 %s, %s, %s' % (v(S1, 2), v(S1, 2), v(XF + 2 * i, 2)))
        A('v_pk_fma_f32 %s, %s, %s, %s' % (v(S2, 2), v(XF + 2 * i, 2), v(XF + 2 * i, 2), v(S2, 2)))
    A('v_add_f32 %s, %s, %s' % (v(S1), v(S1), v(S1 + 1)))
    A('v_add_f32 %s, %s, %s' % (v(S1 + 1), v(S2), v(S2 + 1)))
    for r in (S1, S1 + 1):
        A('v_add_f32_dpp %s, %s, %s row_ror:8 row_mask:0xf bank_mask:0xf' % (v(r), v(r), v(r)))
    for sw in ('v_permlane16_swap_b32', 'v_permlane32_swap_b32'):
        A('v_mov_b32 %s, %s' % (v(S2), v(S1)))
        A('v_mov_b32 %s, %s' % (v(S2 + 1), v(S1 + 1)))
        A('%s %s, %s' % (sw, v(S1), v(S2)))
        A('%s %s, %s' % (sw, v(S1 + 1), v(S2 + 1)))
        A('v_pk_add_f32 %s, %s, %s' % (v(S1, 2), v(S1, 2), v(S2, 2)))
    A('v_and_b32 %s, 7, %s' % (v(vA), v(vL)))
    A('v_lshlrev_b32 %s, 3, %s' % (v(vA), v(vA)))
    A('v_add_u32 %s, s%d, %s' % (v(vB), sSW, v(vA)))
    A('s_mov_b64 exec, 0xff')
    ds('ds_write_b64 %s, %s offset:%d' % (v(vB), v(S1, 2), U15 + 256))
    A('s_mov_b64 exec, -1')
    stamp('preB1')
    barrier()
    A('s_cmp_ge_u32 s%d, 24' % sJ)
    A('s_cbranch_scc1 L_nopub')
    A('s_cmp_lg_u32 s%d, 0' % sW)
    A('s_cbranch_scc1 L_nopub')
    A('v_lshrrev_b32 %s, 4, %s' % (v(vB), v(vL)))
    A('v_lshlrev_b32 %s, 14, %s' % (v(vB), v(vB)))
    A('v_and_b32 %s, 15, %s' % (v(vC_), v(vL)))
    A('v_lshlrev_b32 %s, 2, %s' % (v(vC_), v(vC_)))
    A('v_add3_u32 %s, %s, %s, s%d' % (v(vB), v(vB), v(vC_), sSW))
    for i in range(4):
        A('ds_read_b32 %s, %s offset:%d' % (v(ACC + i), v(vB), U15 + 64 * i))
    A('s_lshr_b32 s%d, s%d, 2' % (sT[0], sJ))
    A('s_mov_b32 s%d, 0' % sT[2])
    A('s_cmp_eq_u32 s%d, 1' % sT[0])
    A('s_cselect_b32 s%d, 1.0, s%d' % (sT[2], sT[2]))
    A('s_cmp_eq_u32 s%d, 4' % sT[0])
    A('s_cselect_b32 s%d, 1.0, s%d' % (sT[2], sT[2]))
    A('s_lshl_b32 s%d, s%d, 7' % (sT[3], sCG))
    A('s_add_u32 s%d, s%d, 0x%x' % (sT[3], sT[3], WS_MOD))
    A('v_and_b32 %s, 1, %s' % (v(vD), v(vL)))
    A('v_lshlrev_b32 %s, 4, %s' % (v(vD), v(vD)))
    A('v_lshrrev_b32 %s, %s, s%d' % (v(vD), v(vD), sN))
    A('s_waitcnt lgkmcnt(0)')
    A('v_add_f32 %s, %s, %s' % (v(ACC), v(ACC), v(ACC + 1)))
    A('v_add_f32 %s, %s, %s' % (v(ACC + 2), v(ACC + 2), v(ACC + 3)))
    A('v_add_f32 %s, %s, %s' % (v(ACC), v(ACC), v(ACC + 2)))
    for sw in ('v_permlane16_swap_b32', 'v_permlane32_swap_b32'):
        A('v_mov_b32 %s, %s' % (v(ACC + 1), v(ACC)))
        A('%s %s, %s' % (sw, v(ACC), v(ACC + 1)))
        A('v_add_f32 %s, %s, %s' % (v(ACC), v(ACC), v(ACC + 1)))
    A('v_cvt_pk_bf16_f32 %s, 0, %s' % (v(ACC), v(ACC)))
    A('v_add_f32 %s, s%d, %s' % (v(ACC), sT[2], v(ACC)))
    A('v_cvt_pk_bf16_f32 %s, %s, %s' % (v(ACC), v(ACC), v(ACC)))
    A('v_perm_b32 %s, %s, %s, s%d' % (v(ACC), v(ACC), v(vD), sPerm))
    A('s_mov_b64 exec, 0xffff')
    A('buffer_store_dword %s, %s, %s, s%d offen sc1' % (v(ACC), v(vC_), s(rWS, 4), sT[3]))
    A('s_mov_b64 exec, -1')
    A.label('L_nopub')
    stamp('modpub')
    A('v_add_u32 %s, 0x%x, %s' % (v(vA), S0 + U15 + 256, v(vA)))
    ST = 84
    for wv in range(4):
        ds('ds_read_b64 %s, %s offset:%d' % (v(ST + 2 * wv, 2), v(vA), wv * 16384))
    LG.wait0()
    A('v_pk_add_f32 %s, %s, %s' % (v(ST, 2), v(ST, 2), v(ST + 2, 2)))
    A('v_pk_add_f32 %s, %s, %s' % (v(ST + 4, 2), v(ST + 4, 2), v(ST + 6, 2)))
    A('v_pk_add_f32 %s, %s, %s' % (v(ST, 2), v(ST, 2), v(ST + 4, 2)))
    A('v_mul_f32 %s, 0x3b000000, %s' % (v(ST), v(ST)))
    A('v_mul_f32 %s, 0x3b000000, %s' % (v(ST + 1), v(ST + 1)))
    A('v_fma_f32 %s, -%s, %s, %s' % (v(ST + 1), v(ST), v(ST), v(ST + 1)))
    A('v_max_f32 %s, 0, %s' % (v(ST + 1), v(ST + 1)))
    A('v_add_f32 %s, 0x3727c5ac, %s' % (v(ST + 1), v(ST + 1)))
    A('v_rsq_f32 %s, %s' % (v(ST + 2), v(ST + 1)))
    A('v_mul_f32 %s, %s, %s' % (v(ST + 4), v(ST), v(ST + 2)))
    for i in range(8):
        A('v_pk_fma_f32 %s, %s, %s, %s op_sel_hi:[1,0,0] neg_lo:[0,0,1] neg_hi:[0,0,1]' % (v(XF + 2 * i, 2), v(XF + 2 * i, 2), v(ST + 2, 2), v(ST + 4, 2)))
    VM.wait('wphi')
    A('v_bfe_u32 %s, %s, 4, 1' % (v(vA), v(vL)))
    A('v_cmp_eq_u32 vcc, 0, %s' % v(vA))
    for i in range(4):
        A('v_lshl_or_b32 %s, %s, 16, %s' % (v(WPH + i), v(WPH + 2 * i + 1), v(WPH + 2 * i)))
    for i in range(4):
        A('v_cndmask_b32 %s, %s, 0, vcc' % (v(WPH + 4 + i), v(WPH + i)))
    for i in range(4):
        A('v_cndmask_b32 %s, 0, %s, vcc' % (v(WPH + i), v(WPH + i)))
    stage_convert(0)
    stamp('cvt0')
    MD = 88
    HL = 92
    A('v_lshrrev_b32 %s, 5, %s' % (v(vA), v(vL)))
    A('v_lshlrev_b32 %s, 5, %s' % (v(vA), v(vA)))
    A('v_bfe_u32 %s, %s, 2, 3' % (v(vB), v(vL)))
    A('v_add_u32 %s, %s, %s' % (v(vA), v(vA), v(vB)))
    A('v_lshlrev_b32 %s, 7, %s' % (v(vA), v(vA)))
    A('v_and_b32 %s, 3, %s' % (v(vB), v(vL)))
    A('v_lshl_add_u32 %s, %s, 4, %s' % (v(vA), v(vB), v(vA)))
    A('s_lshl_b32 s%d, s%d, 10' % (sT[0], sW))
    A('s_add_u32 s%d, s%d, 0x%x' % (sT[0], sT[0], WS_MOD))
    A('v_and_b32 %s, 15, %s' % (v(vB), v(vL)))
    A('v_lshlrev_b32 %s, 10, %s' % (v(vB), v(vB)))
    A('s_and_b32 s%d, s2, 0x87' % sT[2])
    A('s_lshl_b32 s%d, s%d, 7' % (sT[2], sT[2]))
    A('s_add_u32 s%d, s%d, 0x%x' % (sT[2], sT[2], WS_HELLO))
    def body():
        A('buffer_load_dwordx2 %s, %s, %s, s%d offen sc1' % (v(HL, 2), v(vB), s(rWS, 4), sT[2]))
        VM.wait0()
        A('v_cmp_ne_u32 vcc, s%d, %s' % (sN, v(HL)))
    poll(body, 'hello')
    A('v_cmp_ne_u32 vcc, s%d, %s' % (sXcc, v(HL + 1)))
    A('s_cmp_eq_u64 vcc, 0')
    A('s_cselect_b32 s%d, 1, 0' % sPure)
    vRW, vRR, vHS = 11, 12, 13
    A('v_add_u32 %s, s%d, %s' % (v(vRW), sSW, v(vL16)))
    A('v_lshrrev_b32 %s, 3, %s' % (v(vB), v(vL)))
    A('v_lshlrev_b32 %s, 5, %s' % (v(vRR), v(vB)))
    A('v_add_u32 %s, s%d, %s' % (v(vRR), sSW, v(vRR)))
    A('v_lshlrev_b32 %s, 9, %s' % (v(vHS), v(vB)))
    A('v_and_b32 %s, 7, %s' % (v(vB), v(vL)))
    A('v_lshl_add_u32 %s, %s, 4, %s' % (v(vHS), v(vB), v(vHS)))
    A('s_lshr_b32 s%d, s%d, 2' % (sT[3], sC))
    A('s_lshl_b32 s%d, s%d, 15' % (sT[3], sT[3]))
    A('s_lshl_b32 s%d, s%d, 13' % (sT[4], sW))
    A('s_add_u32 s%d, s%d, s%d' % (sT[3], sT[3], sT[4]))
    A('s_and_b32 s%d, s%d, 3' % (sT[4], sC))
    A('s_lshl_b32 s%d, s%d, 7' % (sT[4], sT[4]))
    A('s_add_u32 s%d, s%d, s%d' % (sT[3], sT[3], sT[4]))
    A('s_add_u32 s%d, s%d, 4096' % (sT[4], sT[3]))
    def body():
        A('buffer_load_dwordx4 %s, %s, %s, s%d offen sc1' % (v(MD, 4), v(vA), s(rWS, 4), sT[0]))
        VM.wait0()
        A('v_perm_b32 %s, %s, %s, s%d' % (v(HL), v(MD + 1), v(MD), sPerm))
        A('v_perm_b32 %s, %s, %s, s%d' % (v(HL + 1), v(MD + 3), v(MD + 2), sPerm))
        A('v_xor_b32 %s, s%d, %s' % (v(HL), sN, v(HL)))
        A('v_xor_b32 %s, s%d, %s' % (v(HL + 1), sN, v(HL + 1)))
        A('v_or_b32 %s, %s, %s' % (v(HL), v(HL), v(HL + 1)))
        A('v_cmp_ne_u32 vcc, 0, %s' % v(HL))
    poll(body, 'mod')
    stamp('modseen')
    for i in range(4):
        A('v_and_b32 %s, s%d, %s' % (v(MD + i), sMaskHi, v(MD + i)))
    ds('ds_write_b128 %s, %s' % (v(vRW), v(MD, 4)))
    SA, GA = 96, 112
    for i in range(2):
        for hf in range(2):
            ds('ds_read_b128 %s, %s offset:%d' % (v(GA + 8 * i + 4 * hf, 4), v(vRR), 512 + 256 * i + 16 * hf), 'g%d' % i)
            ds('ds_read_b128 %s, %s offset:%d' % (v(SA + 8 * i + 4 * hf, 4), v(vRR), 256 * i + 16 * hf), 'g%d' % i)
    HO = 128
    for i in range(2):
        LG.wait('g%d' % i)
        for jj in range(4):
            k = 8 * i + 2 * jj
            A('v_pk_fma_f32 %s, %s, %s, %s' % (v(XF + k, 2), v(XF + k, 2), v(GA + k, 2), v(SA + k, 2)))
        for jj in range(4):
            k = 8 * i + 2 * jj
            A('v_cvt_pk_bf16_f32 %s, %s, %s' % (v(HO + 4 * i + jj), v(XF + k), v(XF + k + 1)))
    publish([('buffer_store_dwordx4', v(HO, 4), vHS, sT[3], 0), ('buffer_store_dwordx4', v(HO + 4, 4), vHS, sT[4], 0)], 0)
    stamp('hpub')
    A('s_barrier')
    if o['stop'] == 'h':
        finish()
        return A

    HF = 16
    AK, AV = 144, 160
    WB = 176
    vTW = 11
    A('v_lshrrev_b32 %s, 5, %s' % (v(vA), v(vL)))
    A('v_bfe_u32 %s, %s, 2, 2' % (v(vB), v(vL)))
    A('v_lshl_add_u32 %s, %s, 3, %s' % (v(vA), v(vA), v(vB)))
    A('v_lshl_add_u32 %s, %s, 6, %s' % (v(vTW), v(vA), v(vG8)))
    A('v_add_u32 %s, 0x%x, %s' % (v(vTW), WBASE, v(vTW)))
    def wread(ks, segs, base, vaddr, second):
        for si, sg in enumerate(segs):
            for h2 in range(2):
                ds('ds_read_b64_tr_b16 %s, %s offset:%d' % (v(base + 4 * si + 2 * h2, 2), v(vaddr), sg + ks * 1024 + h2 * second), 'w%d_%d' % (ks, si))
    wread(0, SEG[:2], WB, vTW, 256)
    wread(1, SEG[:2], WB + 8, vTW, 256)
    A('v_and_b32 %s, 15, %s' % (v(vA), v(vL)))
    A('s_lshl_b32 s%d, s%d, 4' % (sT[0], sW))
    A('v_add_lshl_u32 %s, %s, s%d, 2' % (v(vA), v(vA), sT[0]))
    A('s_lshl_b32 s%d, s%d, 15' % (sT[0], sW))
    flagpoll(vA, 0, 'h')
    stamp('hseen')
    def fload(dst, region, ks, tag, sb=sT[0]):
        if ks % 4 == 0:
            A('s_add_u32 s%d, s%d, 0x%x' % (sT[5], sb, region + ks * 1024))
        vm('buffer_load_dwordx4 %s, %s, %s, s%d offen offset:%d sc1' % (v(dst, 4), v(vL16), s(rG, 4), sT[5], (ks % 4) * 1024), tag)
    D = o['hdepth']
    for ks in range(D):
        fload(HF + 4 * ks, G_H1, ks, 'h%d' % ks)
    r1 = stage_issue(1)
    for ks in range(32):
        wb = WB + 8 * (ks % 3)
        nb = WB + 8 * ((ks + 2) % 3)
        VM.wait('h%d' % ks)
        LG.wait('w%d_0' % ks)
        mfma(v(AK, 16), v(wb, 4), v(HF + 4 * ks, 4), '0' if ks == 0 else v(AK, 16))
        if ks + 2 < 32:
            wread(ks + 2, SEG[:2], nb, vTW, 256)
        LG.wait('w%d_1' % ks)
        mfma(v(AV, 16), v(HF + 4 * ks, 4), v(wb + 4, 4), '0' if ks == 0 else v(AV, 16))
        if ks + D < 32:
            fload(HF + 4 * (ks + D), G_H1, ks + D, 'h%d' % (ks + D))
        else:
            for _ in range(2):
                if r1:
                    dma(*r1.pop(0))
    while r1:
        dma(*r1.pop(0))
    stamp('loop1')
    KB = 176
    PK = 184
    EE = 200
    TT = 232
    PH = 144
    for i in range(8):
        A('v_cvt_pk_bf16_f32 %s, %s, %s' % (v(KB + i), v(AK + 2 * i), v(AK + 2 * i + 1)))
    mfma(v(PK, 16), v(WPH, 4), v(KB, 4), '0')
    mfma(v(PK, 16), v(WPH + 4, 4), v(KB + 4, 4), v(PK, 16))
    for i in range(8):
        A('v_cvt_pk_bf16_f32 %s, %s, %s' % (v(AV + i), v(AV + 2 * i), v(AV + 2 * i + 1)))
    A('v_bfe_u32 %s, %s, 4, 1' % (v(vA), v(vL)))
    A('v_cmp_eq_u32 vcc, 0, %s' % v(vA))
    for i in range(8):
        A('v_cndmask_b32 %s, %s, 0, vcc' % (v(AV + 8 + i), v(AV + i)))
    for i in range(8):
        A('v_cndmask_b32 %s, 0, %s, vcc' % (v(AV + i), v(AV + i)))
    softmax_pm(PK, EE, TT, PH)
    TR = 200
    for hd in range(2):
        mfma(v(TR + 16 * hd, 16), v(PH + 8 * hd, 4), v(IDN, 4), '0')
        mfma(v(TR + 16 * hd, 16), v(PH + 8 * hd + 4, 4), v(IDN + 4, 4), v(TR + 16 * hd, 16))
    TP = 176
    KV = 144
    ZZ = 192
    for hd in range(2):
        for i in range(8):
            A('v_cvt_pk_bf16_f32 %s, %s, %s' % (v(TP + 8 * hd + i), v(TR + 16 * hd + 2 * i), v(TR + 16 * hd + 2 * i + 1)))
        for ks in range(2):
            mfma(v(KV, 16), v(TP + 8 * hd + 4 * ks, 4), v(AV + 8 * hd + 4 * ks, 4), '0' if hd == 0 and ks == 0 else v(KV, 16))
    for hd in range(2):
        t = TR + 16 * hd
        for st in (8, 4, 2):
            for i in range(0, st, 2):
                A('v_pk_add_f32 %s, %s, %s' % (v(t + i, 2), v(t + i, 2), v(t + st + i, 2)))
        A('v_add_f32 %s, %s, %s' % (v(ZZ + hd), v(t), v(t + 1)))
    A('v_permlane32_swap_b32 %s, %s' % (v(ZZ), v(ZZ + 1)))
    A('v_add_f32 %s, %s, %s' % (v(ZZ), v(ZZ), v(ZZ + 1)))
    A('s_lshl_b32 s%d, s%d, 3' % (sT[1], sW))
    A('v_xor_b32 %s, s%d, %s' % (v(vA), sT[1], v(vL)))
    A('v_lshl_add_u32 %s, %s, 2, s%d' % (v(vA), v(vA), sSW))
    ds('ds_write_b32 %s, %s offset:%d' % (v(vA), v(ZZ), U15 + 512))
    A('v_add_u32 %s, s%d, %s' % (v(vB), sSW, v(vL16)))
    for g in range(1, 4):
        ds('ds_write_b128 %s, %s offset:%d' % (v(vB), v(KV + 4 * g, 4), (11 + g) * 1024))
    for g in range(1, 4):
        A('v_xor_b32 %s, 0x%x, %s' % (v(12 + g), g << 14, v(vB)))
    A('v_and_b32 %s, 15, %s' % (v(vA), v(vL)))
    A('s_lshl_b32 s%d, s%d, 4' % (sT[1], sW))
    A('v_add_lshl_u32 %s, %s, s%d, 2' % (v(vA), v(vA), sT[1]))
    A('v_add_u32 %s, 0x%x, %s' % (v(vA), S0 + U15 + 512, v(vA)))
    A('s_lshl_b32 s%d, s%d, 16' % (sT[1], sC))
    A('s_lshl_b32 s%d, s%d, 10' % (sT[2], sW))
    A('s_add_u32 s%d, s%d, s%d' % (sT[1], sT[1], sT[2]))
    A('s_add_u32 s%d, s%d, 0x%x' % (sT[1], sT[1], WS_KV))
    A('s_lshl_b32 s%d, s%d, 12' % (sT[2], sR))
    A('s_add_u32 s%d, s%d, s%d' % (sT[2], sT[2], sT[1]))
    barrier()
    RD = 200
    for g in range(1, 4):
        ds('ds_read_b128 %s, %s offset:%d' % (v(RD + 4 * g, 4), v(12 + g), (11 + g) * 1024))
    for wv in range(4):
        ds('ds_read_b32 %s, %s offset:%d' % (v(RD + wv), v(vA), wv * 16384))
    A('v_mov_b32 %s, s%d' % (v(KV + 7), sN))
    LG.wait0()
    for g in range(1, 4):
        A('v_pk_add_f32 %s, %s, %s' % (v(KV, 2), v(KV, 2), v(RD + 4 * g, 2)))
        A('v_pk_add_f32 %s, %s, %s' % (v(KV + 2, 2), v(KV + 2, 2), v(RD + 4 * g + 2, 2)))
    A('v_pk_add_f32 %s, %s, %s' % (v(RD, 2), v(RD, 2), v(RD + 2, 2)))
    A('v_cvt_pk_bf16_f32 %s, %s, %s' % (v(KV + 4), v(KV), v(KV + 1)))
    A('v_cvt_pk_bf16_f32 %s, %s, %s' % (v(KV + 5), v(KV + 2), v(KV + 3)))
    A('v_add_f32 %s, %s, %s' % (v(KV + 6), v(RD), v(RD + 1)))
    vm('buffer_store_dwordx4 %s, %s, %s, s%d offen sc1' % (v(KV + 4, 4), v(vL16), s(rWS, 4), sT[2]))
    stamp('kvpub')
    sKVb = 3
    A('s_mov_b32 s%d, s%d' % (sKVb, sT[1]))
    if o['stop'] == 'kv':
        finish()
        return A
    vDW1 = 12
    sW1b, sLW = sT[1], sT[2]
    A('v_lshrrev_b32 %s, 2, %s' % (v(vA), v(vL)))
    A('v_mul_u32_u24 %s, 0xac0, %s' % (v(vA), v(vA)))
    A('v_and_b32 %s, 3, %s' % (v(vB), v(vL)))
    A('v_lshl_add_u32 %s, %s, 4, %s' % (v(vDW1), v(vB), v(vA)))
    sT0 = 5
    A('s_mul_i32 s%d, s%d, 3' % (sT0, sC))
    A('s_lshl_b32 s%d, s%d, 1' % (sT[3], sC))
    A('s_add_u32 s%d, s%d, 11' % (sT[3], sT[3]))
    A('s_min_u32 s%d, s%d, s%d' % (sT0, sT0, sT[3]))
    A('s_mul_i32 s%d, s%d, %d' % (sW1b, sW, 128 * 2752))
    A('s_lshl_b32 s%d, s%d, 6' % (sT[3], sT0))
    A('s_add_u32 s%d, s%d, s%d' % (sW1b, sW1b, sT[3]))
    A('s_lshl_b32 s%d, s%d, 13' % (sLW, sW))
    w1a = [(rW1, vDW1, sW1b, p * 16 * 2752 + 64 * t, sLW, WBASE + SEG[t] + p * 1024, 'w1') for t in range(2) for p in range(8)]
    w1b = [(rW1, vDW1, sW1b, p * 16 * 2752 + 64 * 2, sLW, WBASE + SEG[2] + p * 1024, 'w1') for p in range(8)]
    AQ = 160
    A('v_add_u32 %s, 0x10000, %s' % (v(vTW), v(vTW)))
    QB = 176
    for ks in range(3):
        wread(ks, [0], QB + 4 * ks, vTW, 256)
    for ks in range(32):
        LG.wait('w%d_0' % ks)
        mfma(v(AQ, 16), v(QB + 4 * (ks % 4), 4), v(HF + 4 * ks, 4), '0' if ks == 0 else v(AQ, 16))
        if ks + 3 < 32:
            wread(ks + 3, [0], QB + 4 * ((ks + 3) % 4), vTW, 256)
        if ks % 2 == 0:
            dma(*w1a.pop(0))
    A('s_barrier')
    for t in w1b:
        dma(*t)
    stamp('qloop')
    stage_convert(1)
    for t in stage_issue(2):
        dma(*t)
    PG = 16
    TB = 64
    XE = 80
    sN0 = 4
    A('s_and_b32 s%d, s%d, 7' % (sN0, sC))
    A('s_lshl_b32 s%d, s%d, 1' % (sN0, sN0))
    A('s_lshr_b32 s%d, s%d, 1' % (sT[3], sW))
    A('s_add_u32 s%d, s%d, s%d' % (sN0, sN0, sT[3]))
    vXO = 13
    sRow = 6
    A('s_lshr_b32 s%d, s%d, 3' % (sRow, sC))
    A('s_lshl_b32 s%d, s%d, 1' % (sRow, sRow))
    A('s_and_b32 s%d, s%d, 1' % (sT[3], sW))
    A('s_add_u32 s%d, s%d, s%d' % (sRow, sRow, sT[3]))
    A('s_lshl_b32 s%d, s%d, 2' % (sT[3], sR))
    A('s_add_u32 s%d, s%d, s%d' % (sT[3], sT[3], sRow))
    A('s_lshl_b32 s%d, s%d, 15' % (sT[3], sT[3]))
    A('s_lshl_b32 s%d, s%d, 6' % (sT[4], sN0))
    sXO = 7
    A('s_add_u32 s%d, s%d, s%d' % (sXO, sT[3], sT[4]))
    A('v_and_b32 %s, 31, %s' % (v(vA), v(vL)))
    A('v_lshlrev_b32 %s, 10, %s' % (v(vA), v(vA)))
    A('v_lshrrev_b32 %s, 5, %s' % (v(vB), v(vL)))
    A('v_lshl_add_u32 %s, %s, 3, %s' % (v(vXO), v(vB), v(vA)))
    for g in range(4):
        vm('buffer_load_dwordx2 %s, %s, %s, s%d offen offset:%d' % (v(XE + 2 * g, 2), v(vXO), s(rX, 4), sXO, 16 * g), 'xe')
    for i in range(8):
        A('v_cvt_pk_bf16_f32 %s, %s, %s' % (v(KB + i), v(AQ + 2 * i), v(AQ + 2 * i + 1)))
    mfma(v(PK, 16), v(WPH, 4), v(KB, 4), '0')
    mfma(v(PK, 16), v(WPH + 4, 4), v(KB + 4, 4), v(PK, 16))
    softmax_pm(PK, EE, TT, PH)
    stamp('phiq')
    A('v_lshlrev_b32 %s, 4, %s' % (v(vB), v(vB)))
    A('v_lshrrev_b32 %s, 2, %s' % (v(vA), v(vL)))
    A('v_lshlrev_b32 %s, 7, %s' % (v(vA), v(vA)))
    A('v_and_b32 %s, 3, %s' % (v(vC_), v(vL)))
    A('v_lshl_add_u32 %s, %s, 4, %s' % (v(vA), v(vC_), v(vA)))
    A('s_lshl_b32 s%d, s%d, 8' % (sT[3], sN0))
    def body():
        for ci, ch in enumerate((2, 4, 5)):
            A('s_add_u32 s%d, s%d, 0x%x' % (sT[4], sT[3], WS_MOD + ch * 4096))
            for g in range(4):
                A('buffer_load_dwordx4 %s, %s, %s, s%d offen offset:%d sc1' % (v(PG + 16 * ci + 4 * g, 4), v(vB), s(rWS, 4), sT[4], (g >> 1) * 128 + (g & 1) * 32))
        for i in range(4):
            A('s_mov_b32 s%d, 0x%x' % (sT[4], WS_MOD + (4 if i < 2 else 3) * 4096 + (i & 1) * 2048))
            A('buffer_load_dwordx4 %s, %s, %s, s%d offen sc1' % (v(TB + 4 * i, 4), v(vA), s(rWS, 4), sT[4]))
        VM.wait0()
        A('v_mov_b32 %s, 0' % v(vC_))
        for i in range(32):
            A('v_perm_b32 %s, %s, %s, s%d' % (v(vD), v(PG + 2 * i + 1), v(PG + 2 * i), sPerm))
            A('v_bitop3_b32 %s, %s, %s, s%d bitop3:0xf6' % (v(vC_), v(vC_), v(vD), sN))
        A('v_cmp_ne_u32 vcc, 0, %s' % v(vC_))
    poll(body, 'par')
    for i in range(48):
        A('v_and_b32 %s, s%d, %s' % (v(PG + i), sMaskHi, v(PG + i)))
    for i in range(8):
        A('v_perm_b32 %s, %s, %s, s%d' % (v(TB + i), v(TB + 2 * i + 1), v(TB + 2 * i), sPermHi))
    stamp('par')
    GT = 176
    def body():
        for rr in range(16):
            A('s_add_u32 s%d, s%d, 0x%x' % (sT[4], sKVb, rr * 4096))
            A('buffer_load_dwordx4 %s, %s, %s, s%d offen sc1' % (v(GT + 4 * rr, 4), v(vL16), s(rWS, 4), sT[4]))
        VM.wait0()
        A('v_xor_b32 %s, s%d, %s' % (v(vC_), sN, v(GT + 3)))
        for rr in range(1, 16):
            A('v_bitop3_b32 %s, %s, %s, s%d bitop3:0xf6' % (v(vC_), v(vC_), v(GT + 4 * rr + 3), sN))
        A('v_cmp_ne_u32 vcc, 0, %s' % v(vC_))
    poll(body, 'kv')
    stamp('kvseen')
    KT = 160
    A('v_mov_b32 %s, 0x3f80' % v(vA))
    A('v_mov_b32 %s, 0x3f800000' % v(vB))
    for rr in range(16):
        g = GT + 4 * rr
        for i in range(4):
            A('v_dot2_f32_bf16 %s, %s, %s, %s' % (v(KT + i), v(g + (i >> 1)), v(vA + (i & 1)), '0' if rr == 0 else v(KT + i)))
        if rr:
            A('v_add_f32 %s, %s, %s' % (v(GT + 2), v(GT + 2), v(g + 2)))
    A('v_lshl_add_u32 %s, %s, 3, s%d' % (v(vC_), v(vL), sSW))
    A('v_bfe_u32 %s, %s, 2, 1' % (v(vA), v(vL)))
    A('v_lshlrev_b32 %s, 4, %s' % (v(vA), v(vA)))
    A('v_bfe_u32 %s, %s, 3, 1' % (v(vB), v(vL)))
    A('v_lshl_add_u32 %s, %s, 3, %s' % (v(vA), v(vB), v(vA)))
    A('v_and_b32 %s, 3, %s' % (v(vB), v(vL)))
    A('v_lshl_add_u32 %s, %s, 1, %s' % (v(vA), v(vB), v(vA)))
    A('s_lshl_b32 s%d, s%d, 5' % (sT[3], sW))
    A('s_add_u32 s%d, s%d, 0x%x' % (sT[3], sT[3], S0 + 3 * 16384 + U15 + 512))
    A('v_add_u32 %s, s%d, %s' % (v(vA), sT[3], v(vA)))
    A('v_cvt_pk_bf16_f32 %s, %s, %s' % (v(KT), v(KT), v(KT + 1)))
    A('v_cvt_pk_bf16_f32 %s, %s, %s' % (v(KT + 1), v(KT + 2), v(KT + 3)))
    A('v_cvt_pk_bf16_f32 %s, %s, %s' % (v(KT + 2), v(GT + 2), v(GT + 2)))
    ds('ds_write_b64 %s, %s offset:%d' % (v(vC_), v(KT, 2), U15))
    ds('ds_write_b16 %s, %s' % (v(vA), v(KT + 2)))
    A('v_lshlrev_b32 %s, 3, %s' % (v(vC_), v(vL)))
    A('v_add_u32 %s, 0x%x, %s' % (v(vC_), S0 + U15, v(vC_)))
    A('v_lshrrev_b32 %s, 5, %s' % (v(vA), v(vL)))
    A('v_lshlrev_b32 %s, 4, %s' % (v(vA), v(vA)))
    A('v_add_u32 %s, 0x%x, %s' % (v(vA), S0 + 3 * 16384 + U15 + 512, v(vA)))
    A('v_bfe_u32 %s, %s, 4, 1' % (v(vB), v(vL)))
    A('v_cmp_eq_u32 vcc, 0, %s' % v(vB))
    barrier()
    KA = 176
    ZF = 200
    for wv in range(4):
        ds('ds_read_b64 %s, %s offset:%d' % (v(KA + 2 * wv, 2), v(vC_), wv * 16384), 'ka')
    for g in range(4):
        ds('ds_read_b128 %s, %s offset:%d' % (v(ZF + 4 * g, 4), v(vA), 32 * g), 'zf')
    LG.wait('ka')
    for i in range(8):
        A('v_cndmask_b32 %s, %s, 0, vcc' % (v(KA + 8 + i), v(KA + i)))
    for i in range(8):
        A('v_cndmask_b32 %s, 0, %s, vcc' % (v(KA + i), v(KA + i)))
    OA = 160
    for hd in range(2):
        for sg in range(2):
            mfma(v(OA, 16), v(KA + 8 * hd + 4 * sg, 4), v(PH + 8 * hd + 4 * sg, 4), '0' if hd == 0 and sg == 0 else v(OA, 16))
    LG.wait('zf')
    DN = 216
    for i in range(8):
        for hd in range(2):
            A('v_dot2_f32_bf16 %s, %s, %s, %s' % (v(DN + 2 * hd), v(PH + 8 * hd + i), v(ZF + 8 * hd + i), '0' if i == 0 else v(DN + 2 * hd)))
    def post(x):
        A('v_add_f32 %s, 0x358637bd, %s' % (v(x), v(x)))
        A('v_rcp_f32 %s, %s' % (v(x), v(x)))
    halfsum_pair(DN, DN + 2, 'v_add_f32', post)
    for hd in range(2):
        for i in range(4):
            r = OA + 8 * hd + 2 * i
            A('v_pk_mul_f32 %s, %s, %s op_sel_hi:[1,0]' % (v(r, 2), v(r, 2), v(DN + 2 * hd, 2)))
    OP = 220
    for i in range(8):
        A('v_cvt_pk_bf16_f32 %s, %s, %s' % (v(OP + i), v(OA + 2 * i), v(OA + 2 * i + 1)))
    A('s_lshl_b32 s%d, s%d, 4' % (sT[3], sW))
    A('s_add_u32 s%d, s%d, s%d' % (sT[3], sT[3], sC))
    A('s_lshl_b32 s%d, s%d, 11' % (sT[3], sT[3]))
    A('s_add_u32 s%d, s%d, 0x%x' % (sT[3], sT[3], G_O))
    publish([('buffer_store_dwordx4', v(OP, 4), vL16, sT[3], 0), ('buffer_store_dwordx4', v(OP + 4, 4), vL16, sT[3], 1024)], 1)
    stamp('opub')
    if o['stop'] == 'o':
        finish()
        return A
    stage_convert(2)
    vTP = 11
    A('v_lshrrev_b32 %s, 5, %s' % (v(vA), v(vL)))
    A('v_bfe_u32 %s, %s, 2, 2' % (v(vB), v(vL)))
    A('v_lshl_add_u32 %s, %s, 2, %s' % (v(vB), v(vA), v(vB)))
    A('v_lshl_add_u32 %s, %s, 6, %s' % (v(vTP), v(vB), v(vG8)))
    A('v_add_u32 %s, 0x%x, %s' % (v(vTP), WBASE, v(vTP)))
    A('s_cmp_eq_u32 s%d, 3' % sW)
    A('s_cbranch_scc1 L_nout')
    A('v_lshrrev_b32 %s, 2, %s' % (v(vB), v(vL)))
    A('v_lshlrev_b32 %s, 5, %s' % (v(vB), v(vB)))
    A('v_and_b32 %s, 1, %s' % (v(vC_), v(vL)))
    A('v_lshl_add_u32 %s, %s, 4, %s' % (v(vB), v(vC_), v(vB)))
    A('v_bfe_u32 %s, %s, 1, 1' % (v(vC_), v(vL)))
    A('v_lshl_add_u32 %s, %s, 3, %s' % (v(vB), v(vC_), v(vB)))
    A('v_add_u32 %s, s%d, %s' % (v(vB), sSW, v(vB)))
    for i in range(4):
        ds('ds_write_b64 %s, %s offset:%d' % (v(vB), v(TB + 2 * i, 2), 512 * i))
    A('v_bfe_u32 %s, %s, 2, 1' % (v(vB), v(vL)))
    A('v_lshlrev_b32 %s, 10, %s' % (v(vB), v(vB)))
    A('v_lshl_add_u32 %s, %s, 4, %s' % (v(vB), v(vA), v(vB)))
    A('v_add_u32 %s, s%d, %s' % (v(vB), sSW, v(vB)))
    A('s_lshl_b32 s%d, s%d, 15' % (sT[3], sW))
    A('v_add_u32 %s, s%d, %s' % (v(vC_), sT[3], v(vTP)))
    UA = 160
    UB = 176
    def uread(ks):
        b = UB + 8 * (ks % 4)
        ds('ds_read_b128 %s, %s offset:%d' % (v(b, 4), v(vB), ks * 32), 'u%d' % ks)
        for h2 in range(2):
            ds('ds_read_b64_tr_b16 %s, %s offset:%d' % (v(b + 4 + 2 * h2, 2), v(vC_), ks * 1024 + h2 * 512), 'u%d' % ks)
    for ks in range(3):
        uread(ks)
    for ks in range(32):
        b = UB + 8 * (ks % 4)
        LG.wait('u%d' % ks)
        mfma(v(UA, 16), v(b, 4), v(b + 4, 4), '0' if ks == 0 else v(UA, 16))
        if ks + 3 < 32:
            uread(ks + 3)
    A('v_cvt_pk_bf16_f32 %s, %s, %s' % (v(UB), v(UA), v(UA)))
    A('v_and_b32 %s, s%d, %s' % (v(UB + 1), sMaskHi, v(UB)))
    A('v_sub_f32 %s, %s, %s' % (v(UB + 1), v(UA), v(UB + 1)))
    A('v_cvt_pk_bf16_f32 %s, %s, 0' % (v(UB + 1), v(UB + 1)))
    A('v_lshl_add_u32 %s, %s, 3, s%d' % (v(vB), v(vL), sSW))
    ds('ds_write_b64 %s, %s offset:%d' % (v(vB), v(UB, 2), U15 + 512))
    LG.wait0()
    A.label('L_nout')
    stamp('ut')

    A('v_bfe_u32 %s, %s, 1, 2' % (v(vA), v(vL)))
    A('v_and_b32 %s, 1, %s' % (v(vB), v(vL)))
    A('v_lshl_add_u32 %s, %s, 2, %s' % (v(vA), v(vA), v(vB)))
    A('s_lshl_b32 s%d, s%d, 4' % (sT[3], sW))
    A('s_and_b32 s%d, s%d, 2' % (sT[4], sRow))
    A('s_add_u32 s%d, s%d, s%d' % (sT[3], sT[3], sT[4]))
    A('v_add_lshl_u32 %s, %s, s%d, 2' % (v(vA), v(vA), sT[3]))
    sB0, sB1 = sT[1], sT[2]
    A('s_lshl_b32 s%d, s%d, 2' % (sB0, sRow))
    A('s_add_u32 s%d, s%d, s%d' % (sB0, sB0, sW))
    A('s_lshl_b32 s%d, s%d, 13' % (sB0, sB0))
    A('s_xor_b32 s%d, s%d, 0x8000' % (sB1, sB0))
    flagpoll(vA, 1, 'o')
    stamp('oseen')
    OF = 96
    AC = 160
    for ks in range(8):
        fload(OF + 4 * ks, G_O, ks, 'o1_%d' % ks, sB1)
    for ks in range(8):
        fload(OF + 32 + 4 * ks, G_O, ks, 'o0_%d' % ks, sB0)
    for t in stage_issue(3):
        dma(*t)
    vPW = 12
    A('v_add_u32 %s, s%d, %s' % (v(vPW), sSW, v(vL16)))
    def pwrite(reg, tau, q):
        ds('ds_write_b128 %s, %s offset:%d' % (v(vPW), reg, ((tau - 1) * 4 + q) * 1024))
    for ks in range(8):
        VM.wait('o1_%d' % ks)
        for tau in (1, 3):
            mfma(v(AC + 16 * tau, 16), a(8 * ks + 4 * (tau >> 1), 4), v(OF + 4 * ks, 4), '0' if ks == 0 else v(AC + 16 * tau, 16))
    wl = [(1, q) for q in range(4)] + [(3, q) for q in range(4)]
    for ks in range(8):
        VM.wait('o0_%d' % ks)
        mfma(v(AC + 32, 16), a(8 * ks + 4, 4), v(OF + 32 + 4 * ks, 4), '0' if ks == 0 else v(AC + 32, 16))
        if ks >= 1:
            tau, q = wl.pop(0)
            pwrite(v(AC + 16 * tau + 4 * q, 4), tau, q)
    wl += [(2, q) for q in range(4)]
    for ks in range(8):
        mfma(v(AC, 16), a(8 * ks, 4), v(OF + 32 + 4 * ks, 4), '0' if ks == 0 else v(AC, 16))
        if wl and ks != 1:
            tau, q = wl.pop(0)
            pwrite(v(AC + 16 * tau + 4 * q, 4), tau, q)
    assert not wl
    for g in range(1, 4):
        A('v_xor_b32 %s, 0x%x, %s' % (v(vA + g - 1), g << 14, v(vPW)))
    XU = 96
    VM.wait('xe')
    for i in range(8):
        A('v_lshlrev_b32 %s, 16, %s' % (v(XU + 2 * i), v(XE + i)))
        A('v_and_b32 %s, s%d, %s' % (v(XU + 2 * i + 1), sMaskHi, v(XE + i)))
    barrier()
    def reduce_in(dst, tmp):
        for tau in range(1, 4):
            for q in range(4):
                ds('ds_read_b128 %s, %s offset:%d' % (v(tmp + 16 * (tau - 1) + 4 * q, 4), v(vA + tau - 1), ((tau - 1) * 4 + q) * 1024), 'r%d' % tau)
        for tau in range(1, 4):
            LG.wait('r%d' % tau)
            for i in range(8):
                A('v_pk_add_f32 %s, %s, %s' % (v(dst + 2 * i, 2), v(dst + 2 * i, 2), v(tmp + 16 * (tau - 1) + 2 * i, 2)))
    reduce_in(AC, AC + 16)
    X1P = 112
    for i in range(8):
        A('v_pk_fma_f32 %s, %s, %s, %s' % (v(AC + 2 * i, 2), v(AC + 2 * i, 2), v(PG + 2 * i, 2), v(XU + 2 * i, 2)))
    for i in range(8):
        A('v_cvt_pk_bf16_f32 %s, %s, %s' % (v(X1P + i), v(AC + 2 * i), v(AC + 2 * i + 1)))
    for i in range(8):
        A('v_lshlrev_b32 %s, 16, %s' % (v(AC + 2 * i), v(X1P + i)))
        A('v_and_b32 %s, s%d, %s' % (v(AC + 2 * i + 1), sMaskHi, v(X1P + i)))
    YP = 120
    for i in range(8):
        A('v_pk_mul_f32 %s, %s, %s' % (v(XU + 2 * i, 2), v(AC + 2 * i, 2), v(PG + 16 + 2 * i, 2)))
    for i in range(8):
        A('v_cvt_pk_bf16_f32 %s, %s, %s' % (v(YP + i), v(XU + 2 * i), v(XU + 2 * i + 1)))
    S1, S2 = 128, 130
    A('v_pk_add_f32 %s, %s, %s' % (v(S1, 2), v(AC, 2), v(AC + 2, 2)))
    A('v_pk_mul_f32 %s, %s, %s' % (v(S2, 2), v(AC, 2), v(AC, 2)))
    A('v_pk_fma_f32 %s, %s, %s, %s' % (v(S2, 2), v(AC + 2, 2), v(AC + 2, 2), v(S2, 2)))
    for i in range(2, 8):
        A('v_pk_add_f32 %s, %s, %s' % (v(S1, 2), v(S1, 2), v(AC + 2 * i, 2)))
        A('v_pk_fma_f32 %s, %s, %s, %s' % (v(S2, 2), v(AC + 2 * i, 2), v(AC + 2 * i, 2), v(S2, 2)))
    A('v_add_f32 %s, %s, %s' % (v(S1), v(S1), v(S1 + 1)))
    A('v_add_f32 %s, %s, %s' % (v(S2), v(S2), v(S2 + 1)))
    A('v_permlane32_swap_b32 %s, %s' % (v(S1), v(S2)))
    A('v_add_f32 %s, %s, %s' % (v(S1), v(S1), v(S2)))
    A('v_and_b32 %s, 31, %s' % (v(vA), v(vL)))
    A('v_lshlrev_b32 %s, 4, %s' % (v(vA), v(vA)))
    A('v_lshrrev_b32 %s, 5, %s' % (v(vB), v(vL)))
    A('v_lshl_add_u32 %s, %s, 2, %s' % (v(vA), v(vB), v(vA)))
    A('s_lshl_b32 s%d, s%d, 12' % (sT[3], sRow))
    A('s_lshr_b32 s%d, s%d, 1' % (sT[4], sN0))
    A('s_lshl_b32 s%d, s%d, 9' % (sT[4], sT[4]))
    A('s_add_u32 s%d, s%d, s%d' % (sT[3], sT[3], sT[4]))
    A('s_and_b32 s%d, s%d, 1' % (sT[4], sN0))
    A('s_lshl_b32 s%d, s%d, 3' % (sT[4], sT[4]))
    A('s_add_u32 s%d, s%d, s%d' % (sT[3], sT[3], sT[4]))
    A('s_add_u32 s%d, s%d, 0x%x' % (sT[3], sT[3], G_STAT))
    A('s_lshl_b32 s%d, s%d, 4' % (sT[4], sRow))
    A('s_add_u32 s%d, s%d, s%d' % (sT[4], sT[4], sN0))
    A('s_lshl_b32 s%d, s%d, 11' % (sT[4], sT[4]))
    A('s_add_u32 s%d, s%d, 0x%x' % (sT[4], sT[4], G_Y))
    publish([('buffer_store_dwordx4', v(YP, 4), vL16, sT[4], 0), ('buffer_store_dwordx4', v(YP + 4, 4), vL16, sT[4], 1024),
             ('buffer_store_dword', v(S1), vA, sT[3], 0)], 2)
    stamp('ypub')
    for i in range(16):
        A('v_accvgpr_write_b32 %s, %s' % (a(240 + i), v(AC + i)))
    GB = 240
    for i in range(16):
        A('v_mov_b32 %s, %s' % (v(GB + i), v(PG + 32 + i)))
    if o['stop'] == 'y':
        finish()
        return A
    stage_convert(3)
    UF = 228
    A('v_lshlrev_b32 %s, 3, %s' % (v(vA), v(vL)))
    A('v_add_u32 %s, 0x%x, %s' % (v(vA), S0 + U15 + 512, v(vA)))
    for t in range(3):
        ds('ds_read_b64 %s, %s offset:%d' % (v(UF + 4 * t, 2), v(vA), t * 16384))
        A('v_mov_b32 %s, 0' % v(UF + 4 * t + 2))
        A('v_mov_b32 %s, 0' % v(UF + 4 * t + 3))
    barrier()

    YF = 16
    A3 = 144
    W3 = 192
    vTP2 = 12
    A('v_add_u32 %s, 0x10000, %s' % (v(vTP2), v(vTP)))
    def w3read(ks):
        b = W3 + 12 * (ks % 3)
        for t in range(3):
            for h2 in range(2):
                ds('ds_read_b64_tr_b16 %s, %s offset:%d' % (v(b + 4 * t + 2 * h2, 2), v(vTP2 if t == 2 else vTP), (SEG[t] & 0xffff) + ks * 1024 + h2 * 512), 'w%d_%d' % (ks, t))
    w3read(0)
    w3read(1)
    A('v_and_b32 %s, 15, %s' % (v(vA), v(vL)))
    A('v_lshlrev_b32 %s, 1, %s' % (v(vA), v(vA)))
    A('s_lshr_b32 s%d, s%d, 1' % (sT[3], sW))
    A('s_lshl_b32 s%d, s%d, 5' % (sT[3], sT[3]))
    A('s_and_b32 s%d, s%d, 1' % (sT[4], sW))
    A('s_add_u32 s%d, s%d, s%d' % (sT[3], sT[3], sT[4]))
    A('v_add_lshl_u32 %s, %s, s%d, 2' % (v(vA), v(vA), sT[3]))
    A('v_and_b32 %s, 31, %s' % (v(vB), v(vL)))
    A('v_lshlrev_b32 %s, 4, %s' % (v(vB), v(vB)))
    A('v_lshrrev_b32 %s, 5, %s' % (v(vC_), v(vL)))
    A('v_lshl_add_u32 %s, %s, 11, %s' % (v(vB), v(vC_), v(vB)))
    A('s_lshl_b32 s%d, s%d, 12' % (sT[3], sW))
    A('s_add_u32 s%d, s%d, 0x%x' % (sT[3], sT[3], G_STAT))
    A('s_lshl_b32 s%d, s%d, 15' % (sT[0], sW))
    flagpoll(vA, 2, 'y')
    stamp('yseen')
    D = o['ydepth']
    for ks in range(D):
        fload(YF + 4 * ks, G_Y, ks, 'y%d' % ks)
    r4 = stage_issue(4)
    SS = YF
    BF = YF + 16
    def stat_code():
        c = []
        E_ = c.append
        E_('v_pk_add_f32 %s, %s, %s' % (v(SS, 2), v(SS, 2), v(SS + 2, 2)))
        for i in range(2, 8):
            E_('v_pk_add_f32 %s, %s, %s' % (v(SS, 2), v(SS, 2), v(SS + 2 * i, 2)))
        E_('v_mov_b32 %s, %s' % (v(SS + 2), v(SS)))
        E_('v_mov_b32 %s, %s' % (v(SS + 3), v(SS + 1)))
        E_('v_permlane32_swap_b32 %s, %s' % (v(SS), v(SS + 2)))
        E_('v_permlane32_swap_b32 %s, %s' % (v(SS + 1), v(SS + 3)))
        E_('v_pk_add_f32 %s, %s, %s' % (v(SS, 2), v(SS, 2), v(SS + 2, 2)))
        E_('v_mul_f32 %s, 0xbb000000, %s' % (v(SS), v(SS)))
        E_('v_mul_f32 %s, 0x3b000000, %s' % (v(SS + 1), v(SS + 1)))
        E_('v_fma_f32 %s, -%s, %s, %s' % (v(SS + 1), v(SS), v(SS), v(SS + 1)))
        E_('v_max_f32 %s, 0, %s' % (v(SS + 1), v(SS + 1)))
        E_('v_add_f32 %s, 0x3727c5ac, %s' % (v(SS + 1), v(SS + 1)))
        E_('v_rsq_f32 %s, %s' % (v(SS + 2), v(SS + 1)))
        E_('v_cmp_gt_u32 vcc, 32, %s' % v(vL))
        E_('v_mul_f32 %s, %s, %s' % (v(SS + 1), v(SS + 1), v(SS + 2)))
        E_('v_cndmask_b32 %s, %s, %s, vcc' % (v(SS), v(SS + 1), v(SS)))
        E_('v_cvt_pk_bf16_f32 %s, %s, 0' % (v(BF + 1), v(SS)))
        E_('v_lshlrev_b32 %s, 16, %s' % (v(SS + 1), v(BF + 1)))
        E_('v_sub_f32 %s, %s, %s' % (v(SS + 1), v(SS), v(SS + 1)))
        E_('v_cvt_pk_bf16_f32 %s, %s, %s' % (v(BF), v(SS), v(SS + 1)))
        E_('v_mov_b32 %s, 0' % v(BF + 2))
        E_('v_mov_b32 %s, 0' % v(BF + 3))
        E_('v_lshl_add_u32 %s, %s, 2, s%d' % (v(vA), v(vL), sSW))
        return c
    sc = None
    for ks in range(32):
        wb = W3 + 12 * (ks % 3)
        VM.wait('y%d' % ks)
        if ks == 24:
            VM.wait('st')
            sc = stat_code()
        for t in range(3):
            LG.wait('w%d_%d' % (ks, t))
            mfma(v(A3 + 16 * t, 16), v(wb + 4 * t, 4), v(YF + 4 * ks, 4), '0' if ks == 0 else v(A3 + 16 * t, 16))
            if t == 0 and ks + 2 < 32:
                w3read(ks + 2)
            if t == 1:
                if ks + D < 32:
                    fload(YF + 4 * (ks + D), G_Y, ks + D, 'y%d' % (ks + D))
                else:
                    for _ in range(2):
                        if r4:
                            dma(*r4.pop(0))
            if t == 2 and ks == 5:
                for p in range(4):
                    vm('buffer_load_dwordx4 %s, %s, %s, s%d offen offset:%d sc1' % (v(SS + 4 * p, 4), v(vB), s(rG, 4), sT[3], p * 512), 'st')
            if t == 2 and sc:
                for _ in range(5):
                    if sc:
                        A(sc.pop(0))
    assert not sc
    while r4:
        dma(*r4.pop(0))
    ds('ds_write_b32 %s, %s offset:%d' % (v(vA), v(SS + 2), U15))
    HP = 40
    for t in range(3):
        mfma(v(A3 + 16 * t, 16), v(UF + 4 * t, 4), v(BF, 4), v(A3 + 16 * t, 16))
    stamp('loop3')
    for t in range(3):
        for i in range(8):
            A('v_cvt_pk_bf16_f32 %s, %s, %s' % (v(HP + 8 * t + i), v(A3 + 16 * t + 2 * i), v(A3 + 16 * t + 2 * i + 1)))
        for i in range(8):
            A('v_pk_max_i16 %s, %s, 0' % (v(HP + 8 * t + i), v(HP + 8 * t + i)))
    A('s_mul_i32 s%d, s%d, 44' % (sT[3], sW))
    A('s_add_u32 s%d, s%d, s%d' % (sT[4], sT[3], sT0))
    A('s_lshl_b32 s%d, s%d, 11' % (sT[4], sT[4]))
    A('s_add_u32 s%d, s%d, 0x%x' % (sT[4], sT[4], G_HH))
    A('s_add_u32 s%d, s%d, 43' % (sT[3], sT[3]))
    A('s_lshl_b32 s%d, s%d, 11' % (sT[3], sT[3]))
    A('s_add_u32 s%d, s%d, 0x%x' % (sT[3], sT[3], G_HH))
    A('s_add_u32 s%d, s%d, 4096' % (sT[5], sT[4]))
    A('s_cmp_ge_u32 s%d, 11' % sC)
    A('s_cselect_b32 s%d, s%d, s%d' % (sT[3], sT[3], sT[5]))
    publish([('buffer_store_dwordx4', v(HP + 4 * i, 4), vL16, sT[4], 1024 * i) for i in range(4)] +
            [('buffer_store_dwordx4', v(HP + 16 + 4 * i, 4), vL16, sT[3], 1024 * i) for i in range(2)], 3)
    stamp('Hpub')
    if o['stop'] == 'H':
        finish()
        return A
    stage_convert(4)

    A('v_bfe_u32 %s, %s, 1, 4' % (v(vA), v(vL)))
    A('v_and_b32 %s, 1, %s' % (v(vB), v(vL)))
    A('v_lshl_add_u32 %s, %s, 2, %s' % (v(vA), v(vA), v(vB)))
    A('s_and_b32 s%d, s%d, 2' % (sT[4], sRow))
    A('v_add_lshl_u32 %s, %s, s%d, 2' % (v(vA), v(vA), sT[4]))
    A('s_mul_i32 s%d, s%d, 22' % (sT[3], sW))
    A('s_mul_i32 s%d, s%d, 88' % (sB0, sRow))
    A('s_add_u32 s%d, s%d, s%d' % (sB0, sB0, sT[3]))
    A('s_lshl_b32 s%d, s%d, 10' % (sB0, sB0))
    A('s_xor_b32 s%d, s%d, 1' % (sB1, sRow))
    A('s_mul_i32 s%d, s%d, 88' % (sB1, sB1))
    A('s_add_u32 s%d, s%d, s%d' % (sB1, sB1, sT[3]))
    A('s_lshl_b32 s%d, s%d, 10' % (sB1, sB1))
    srd(rOUT, pOUT, 2048 * 1024)
    flagpoll(vA, 3, 'H')
    stamp('Hseen')
    H1F, H0F = 16, 104
    seq = [(H1F + 4 * ks, ks, 'H1_%d' % ks, sB1) for ks in range(22)] + [(H0F + 4 * ks, ks, 'H0_%d' % ks, sB0) for ks in range(22)]
    def hload():
        if seq:
            d, ks, tag, sb = seq.pop(0)
            if ks % 4 == 0:
                A('s_add_u32 s%d, s%d, 0x%x' % (sT[5], sb, G_HH + ks * 1024))
            vm('buffer_load_dwordx4 %s, %s, %s, s%d offen offset:%d sc1' % (v(d, 4), v(vL16), s(rG, 4), sT[5], (ks % 4) * 1024), tag)
    for _ in range(12):
        hload()
    A('v_add_u32 %s, s%d, %s' % (v(vPW), sSW, v(vL16)))
    def skip3(emit):
        L = A.newlab('w3')
        A('s_cmp_eq_u32 s%d, 3' % sW)
        A('s_cbranch_scc1 %s' % L)
        emit()
        A.label(L)
    def p4a(ks):
        for tau in (1, 3):
            mfma(a(16 * tau, 16), a(64 + 8 * ks + 4 * (tau >> 1), 4), v(H1F + 4 * ks, 4), '0' if ks == 0 else a(16 * tau, 16))
    for ks in range(20):
        VM.wait('H1_%d' % ks)
        p4a(ks)
        hload()
    hload()
    hload()
    VM.wait('H1_21')
    skip3(lambda: (p4a(20), p4a(21)))
    wl = [(1, q) for q in range(4)] + [(3, q) for q in range(4)]
    def p4b(ks, tau):
        mfma(a(16 * tau, 16), a(64 + 8 * ks + 4 * (tau >> 1), 4), v(H0F + 4 * ks, 4), '0' if ks == 0 else a(16 * tau, 16))
    LAG = 6
    for ks in range(20):
        VM.wait('H0_%d' % ks)
        p4b(ks, 2)
        hload()
        if ks >= LAG:
            p4b(ks - LAG, 0)
        if ks >= 1 and wl:
            tau, q = wl.pop(0)
            pwrite(a(16 * tau + 4 * q, 4), tau, q)
    VM.wait('H0_21')
    skip3(lambda: (p4b(20, 2), p4b(21, 2), p4b(20, 0), p4b(21, 0)))
    wl = [(2, q) for q in range(4)]
    for ks in range(20 - LAG, 20):
        p4b(ks, 0)
        if ks >= 20 - LAG + 2 and wl:
            tau, q = wl.pop(0)
            pwrite(a(16 * tau + 4 * q, 4), tau, q)
    assert not wl
    for g in range(1, 4):
        A('v_xor_b32 %s, 0x%x, %s' % (v(vA + g - 1), g << 14, v(vPW)))
    A('v_and_b32 %s, 31, %s' % (v(vD), v(vL)))
    A('s_lshl_b32 s%d, s%d, 14' % (sT[3], sRow))
    A('s_add_u32 s%d, s%d, 0x%x' % (sT[3], sT[3], S0 + U15))
    A('v_lshl_add_u32 %s, %s, 2, s%d' % (v(vD), v(vD), sT[3]))
    FA, FX = 16, 96
    for i in range(16):
        A('v_accvgpr_read_b32 %s, %s' % (v(FX + i), a(240 + i)))
    stamp('loop4')
    barrier()
    ds('ds_read_b32 %s, %s' % (v(112), v(vD)), 'rs')
    for i in range(16):
        A('v_accvgpr_read_b32 %s, %s' % (v(FA + i), a(i)))
    reduce_in(FA, FA + 16)
    for i in range(8):
        A('v_pk_mul_f32 %s, %s, %s op_sel_hi:[1,0]' % (v(GB + 2 * i, 2), v(GB + 2 * i, 2), v(112, 2)))
    for i in range(8):
        A('v_pk_fma_f32 %s, %s, %s, %s' % (v(FA + 2 * i, 2), v(FA + 2 * i, 2), v(GB + 2 * i, 2), v(FX + 2 * i, 2)))
    for i in range(8):
        A('v_cvt_pk_bf16_f32 %s, %s, %s' % (v(FX + i), v(FA + 2 * i), v(FA + 2 * i + 1)))
    for g in range(4):
        vm('buffer_store_dwordx2 %s, %s, %s, s%d offen offset:%d' % (v(FX + 2 * g, 2), v(vXO), s(rOUT, 4), sXO, 16 * g))
    stamp('end')
    finish()
    return A


STAMPS = []

HEADER = """; Fused adaLN + hedgehog linear attention + relu FFN, one persistent launch (generated by dev/gen.py)
; @launch grid=(256,1,1) block=(256,1,1) lds=163840
.amdgcn_target "amdgcn-amd-amdhsa--gfx950"
.text
.globl {n}_kernel
.p2align 8
.type {n}_kernel,@function
{n}_kernel:
"""
FOOTER = """.section .rodata,"a"
.p2align 6
.amdhsa_kernel {n}_kernel
  .amdhsa_next_free_vgpr 512
  .amdhsa_next_free_sgpr 102
  .amdhsa_accum_offset 256
  .amdhsa_group_segment_fixed_size 0
  .amdhsa_kernarg_size 96
  .amdhsa_user_sgpr_count 2
  .amdhsa_user_sgpr_kernarg_segment_ptr 1
  .amdhsa_system_sgpr_workgroup_id_x 1
.end_amdhsa_kernel
"""


def build(debug=False, opts=None):
    del STAMPS[:]
    A = gen(debug, opts)
    return HEADER.format(n=NAME) + A.text() + FOOTER.format(n=NAME), list(STAMPS), A


if __name__ == '__main__':
    import json
    out = sys.argv[1]
    debug = 'debug' in sys.argv[2:]
    opts = {}
    for x in sys.argv[2:]:
        if '=' in x:
            k, val = x.split('=')
            opts[k] = int(val) if val.lstrip('-').isdigit() else val
    txt, st, A = build(debug, opts)
    open(out, 'w').write(txt)
    if debug:
        json.dump(st, open(out + '.stamps', 'w'))
    print('lines', len(A.lines), 'nops', A.nops, 'stamps', st)
```
